```python
import torch

def _softmax(x, axis=-1):
    return torch.softmax(x, dim=axis)
def _gelu(x):
    return torch.nn.functional.gelu(x, approximate="tanh")
def _silu(x):
    return torch.nn.functional.silu(x)
def _sigmoid(x):
    return torch.sigmoid(x)
def _layernorm(x, axis=-1, eps=1e-5):
    m = x.mean(dim=axis, keepdim=True)
    v = x.var(dim=axis, keepdim=True, unbiased=False)
    return (x - m) / torch.sqrt(v + eps)
def _scatter_add(tgt, idx, src, axis=0):
    return tgt.clone().index_add_(axis, idx, src)
def _segment_sum(src, seg, n):
    out = torch.zeros((n,) + src.shape[1:], dtype=src.dtype)
    return out.index_add_(0, seg, src)
def _pad(x, pw):
    flat = tuple(v for pair in reversed(pw) for v in pair)
    return torch.nn.functional.pad(x, flat)

kernel_name = 'sequential_preLN__compressed_kv_cla__dense_activation_silu__decode'

def setup_inputs():

    _w = (lambda a: (lambda t: t.to(torch.bfloat16) if t.is_floating_point() else t)(torch.as_tensor(a)))
    def _A_setup():
        B, H, Sq, Sk, D, M = 1, 32, 1, 8192, 128, 576
        Dc = 4 * D
        return {
            "x": _w((lambda *s: torch.randn(*s, dtype=torch.bfloat16) * 0.05)(B, Sq, M)),
            "c_kv": _w((lambda *s: torch.randn(*s, dtype=torch.bfloat16) * 0.8)(B, Sk, Dc)),
            "w_q": _w((lambda *s: torch.randn(*s, dtype=torch.bfloat16) * 3.2)(M, H, D) * (M ** -0.5)),
            "w_uk": _w((lambda *s: torch.randn(*s, dtype=torch.bfloat16) * 3.2)(Dc, H, D) * (Dc ** -0.5)),
            "w_uv": _w((lambda *s: torch.randn(*s, dtype=torch.bfloat16) * 0.8)(Dc, H, D) * (Dc ** -0.5)),
            "w_o": _w((lambda *s: torch.randn(*s, dtype=torch.bfloat16) * 0.8)(H, D, M) * ((H * D) ** -0.5)),
        }
    _A_in = _A_setup()

    def _B_setup():
        B, S, D, F = 1, 1, 576, 4608
        return {
            "x": _w((lambda *s: torch.randn(*s, dtype=torch.bfloat16) * 0.05)(B, S, D)),
            "w1": _w((lambda *s: torch.randn(*s, dtype=torch.bfloat16) * 3.2)(D, F) * (D ** -0.5)),
            "w2": _w((lambda *s: torch.randn(*s, dtype=torch.bfloat16) * 0.2)(F, D) * (F ** -0.5)),
        }
    _B_in = _B_setup()

    return {
        "A_x": _A_in["x"],
        "A_c_kv": _A_in["c_kv"],
        "A_w_q": _A_in["w_q"],
        "A_w_uk": _A_in["w_uk"],
        "A_w_uv": _A_in["w_uv"],
        "A_w_o": _A_in["w_o"],
        "B_x": _B_in["x"],
        "B_w1": _B_in["w1"],
        "B_w2": _B_in["w2"],
    }

def reference(A_x, A_c_kv, A_w_q, A_w_uk, A_w_uv, A_w_o, B_x, B_w1, B_w2):
    def _A_ref(x, c_kv, w_q, w_uk, w_uv, w_o):
        B, Sq, M = x.shape[0], x.shape[1], x.shape[2]
        Sk = c_kv.shape[1]
        H, D = w_q.shape[1], w_q.shape[2]
        q = torch.einsum("bqm,mhd->bhqd", x, w_q)
        k = torch.einsum("bkc,chd->bhkd", c_kv, w_uk)
        v = torch.einsum("bkc,chd->bhkd", c_kv, w_uv)
        scores = torch.einsum("bhqd,bhkd->bhqk", q, k) * (D ** -0.5)
        off = Sk - Sq
        qi = torch.arange(Sq)[:, None]
        kj = torch.arange(Sk)[None, :]
        cmask = kj <= (qi + off)
        scores = torch.where(cmask[None, None], scores, -1e9)
        p = _softmax(scores, axis=-1)
        ctx = torch.einsum("bhqk,bhkd->bhqd", p, v)
        return torch.einsum("bhqd,hdm->bqm", ctx, w_o)

    def _B_ref(x, w1, w2):
        h = torch.einsum("bsd,df->bsf", x, w1)
        h = _silu(h)
        out = torch.einsum("bsf,fd->bsd", h, w2)
        return out

    x = A_x
    h = x + _A_ref(_layernorm(x, axis=-1), A_c_kv, A_w_q, A_w_uk, A_w_uv, A_w_o)
    h2 = h + _B_ref(_layernorm(h, axis=-1), B_w1, B_w2)
    return h2
```

```python
import re

def regs_of(tok):
    tok = tok.strip()
    tok = re.sub(r'^-', '', tok)
    tok = re.sub(r'^abs\((.*)\)$', r'\1', tok)
    tok = tok.strip('|')
    m = re.fullmatch(r'([vas])(\d+)', tok)
    if m:
        return [(m.group(1), int(m.group(2)))]
    m = re.fullmatch(r'([vas])\[(\d+):(\d+)\]', tok)
    if m:
        return [(m.group(1), i) for i in range(int(m.group(2)), int(m.group(3)) + 1)]
    if tok == 'vcc':
        return [('s', 'vcc')]
    if tok == 'exec':
        return [('s', 'exec')]
    if tok == 'm0':
        return [('s', 'm0')]
    return []

TRANS = ('v_exp_f32', 'v_log_f32', 'v_rcp_f32', 'v_rsq_f32', 'v_sqrt_f32')

class Ins:
    def __init__(self, text, ln):
        self.text = text
        self.ln = ln
        parts = text.split(None, 1)
        self.op = parts[0]
        rest = parts[1] if len(parts) > 1 else ''
        ops = [o.strip() for o in re.split(r',(?![^\[]*\])', rest)] if rest else []
        if ops:
            last = ops[-1].split()
            self.mods = last[1:]
            ops[-1] = last[0]
        else:
            self.mods = []
        self.ops = ops
        op = self.op
        self.valu = op.startswith('v_') and not op.startswith('v_mfma')
        self.mfma = op.startswith('v_mfma')
        self.vmem = op.startswith('buffer_') or op.startswith('global_')
        self.ds = op.startswith('ds_')
        self.salu = op.startswith('s_')
        self.dpp = op.endswith('_dpp')
        self.perml = op.startswith('v_permlane')
        self.trans = any(op.startswith(t) for t in TRANS)
        self.dot = op.startswith('v_dot')
        self.lds_dma = self.vmem and ('lds' in self.mods or 'lds' in op)
        W, R = [], []
        r = [regs_of(o) for o in ops]
        if self.mfma:
            W = r[0]; self.A = r[1]; self.B = r[2]; self.C = r[3]; R = r[1] + r[2] + r[3]
        elif self.perml:
            W = r[0] + r[1]; R = r[0] + r[1]
        elif self.valu:
            W = r[0]; R = sum(r[1:], [])
            if op.startswith('v_fmac') or op.startswith('v_dot2c') or self.dpp:
                R = R + r[0]
            if op.startswith('v_cndmask') and len(ops) == 3:
                R = R + [('s', 'vcc')]
            if op.startswith('v_add_co') or op.startswith('v_addc_co'):
                W = r[0] + r[1]; R = sum(r[2:], [])
        elif self.vmem:
            if 'store' in op or 'atomic' in op:
                R = sum(r, [])
                self.sdata = r[0] if op.startswith('buffer_') else r[1]
            elif self.lds_dma:
                R = sum(r, []) + [('s', 'm0')]
            else:
                W = r[0]; R = sum(r[1:], [])
        elif self.ds:
            if op.startswith('ds_read') or op.startswith('ds_bpermute') or op.startswith('ds_swizzle'):
                W = r[0]; R = sum(r[1:], [])
            else:
                R = sum(r, [])
        elif self.salu:
            if op.startswith('s_cmp') or op.startswith('s_cbranch') or op in ('s_waitcnt', 's_nop', 's_barrier', 's_branch', 's_endpgm', 's_sleep', 's_setprio') or op.startswith('s_bitcmp'):
                R = sum(r, [])
            else:
                W = r[0] if r else []; R = sum(r[1:], [])
        self.W = set(W); self.R = set(R)
        self.states = 1
        if op == 's_nop':
            self.states = int(ops[0], 0) + 1

def need(p, c):
    n = 0
    vW = {x for x in p.W if x[0] in 'va'}
    sW = {x for x in p.W if x[0] == 's'}
    if p.valu:
        if vW & c.R:
            if c.dpp or c.perml or c.mfma:
                n = max(n, 2)
            if c.op.startswith('v_readlane') or c.op.startswith('v_readfirstlane'):
                n = max(n, 1)
            if p.trans and c.valu and not c.trans:
                n = max(n, 1)
            if p.trans and (c.vmem or c.ds):
                n = max(n, 1)
        if p.dot and (vW & (c.R | c.W)):
            same_c = c.op == p.op and not (vW & set(sum([regs_of(o) for o in c.ops[1:3]], [])))
            if not same_c:
                n = max(n, 3)
        if sW & c.R:
            if c.valu:
                n = max(n, 2)
            if c.vmem:
                n = max(n, 5)
            if c.op.startswith('v_readlane') or c.op.startswith('v_writelane'):
                n = max(n, 4)
    if p.mfma:
        if c.mfma:
            if vW & set(c.A + c.B):
                n = max(n, 8)
            if vW & set(c.C) and set(c.C) != vW:
                n = max(n, 6)
            if vW & c.W and set(c.C) != vW and not (vW & set(c.C)):
                n = max(n, 6)
        elif vW & (c.R | c.W):
            n = max(n, 8)
        if c.valu and (set(p.C) & c.W):
            n = max(n, 3)
    if p.salu and ('s', 'm0') in p.W and c.lds_dma:
        n = max(n, 1)
    if p.vmem and hasattr(p, 'sdata') and len(p.sdata) >= 3 and (set(p.sdata) & c.W):
        n = max(n, 2 if c.valu else 1)
    return n

def check(lines):
    ins = []; labels = {}
    for ln, raw in enumerate(lines, 1):
        t = raw.split(';')[0].split('//')[0].strip()
        if not t or t.startswith('.'):
            continue
        m = re.fullmatch(r'([\w.$]+):', t)
        if m:
            labels[m.group(1)] = len(ins); continue
        ins.append(Ins(t, ln))
    errs = []
    def walk(i, p, dist, depth):
        while i < len(ins) and dist < 10:
            c = ins[i]
            k = need(p, c)
            if k > dist:
                errs.append((p, c, k, dist))
            if c.op == 's_endpgm':
                return
            if c.op.startswith('s_cbranch') or c.op == 's_branch':
                tgt = labels.get(c.ops[0])
                if tgt is not None and depth < 3:
                    walk(tgt, p, dist + 1, depth + 1)
                if c.op == 's_branch':
                    return
            dist += c.states
            i += 1
    for i, p in enumerate(ins):
        if p.op in ('s_endpgm', 's_branch'):
            continue
        walk(i + 1, p, 0, 0)
    seen = set()
    for p, c, k, d in errs:
        key = (p.ln, c.ln)
        if key in seen: continue
        seen.add(key)
        print(f'HAZARD need {k} have {d}: L{p.ln} [{p.text}] -> L{c.ln} [{c.text}]')
    return len(seen)
```

```python
import sys, struct, math
import hazard

KN = 'sequential_preLN__compressed_kv_cla__dense_activation_silu__decode_kernel'

class Cfg:
    stamps = False
    nt = True
    x_n = 16
    s1b_n = 4
    stagger = True
    prefetch_code = True
    spin = 0x10000

H1 = 0x1000; H2 = 0x21000; ST = 0x31000; H4 = 0x39000; H56 = 0x49000; H7 = 0x4C000
PAY = 0x100000; DBG = 0x300000; WS_SIZE = 0x340000
OOB = 0x7ff00000
L_CKV = 0; L_QA = 133120; L_PB = 149760
L_WO = 0; L_W1 = 0; L_W2 = 38016; L_WUK = 77824; L_WUV = 110592
L_MX = 153856; L_CB = 153984; L_EX = 155264; L_CS = 156288
LDS_SIZE = 157696

sX, sCKV, sWQ, sWUK, sWUV, sWO, sW1, sW2, sOUT, sWS = 4, 8, 12, 16, 20, 24, 28, 32, 36, 40
sTAG, sW, sXC, sY, sH, sJ = 44, 45, 46, 47, 48, 49
sT0, sT1, sT2, sT3, sT4, sT5 = 50, 51, 52, 53, 54, 55
sU, sCNT, sSPIN = 56, 57, 58
sST = 60

def f2u(x): return struct.unpack('<I', struct.pack('<f', x))[0]
def srd(b): return f's[{b}:{b+3}]'
def vr(b, n=4): return f'v[{b}:{b+n-1}]' if n > 1 else f'v{b}'

class Gen:
    def __init__(self, cfg):
        self.c = cfg; self.L = []; self.nlab = 0; self.stampnames = {}
    def e(self, s):
        for ln in s.strip('\n').split('\n'):
            ln = ln.strip()
            if ln: self.L.append(('' if ln.endswith(':') else '    ') + ln)
    def lab(self, p='L'):
        self.nlab += 1; return f'{p}_{self.nlab}'
    def stamp(self, i, name=None):
        if self.c.stamps:
            self.e(f's_memrealtime s[{sST+2*i}:{sST+2*i+1}]')
    def end(self):
        if self.c.stamps: self.e('s_branch L_dump')
        else: self.e('s_endpgm')
    @property
    def NT(self): return ' nt' if self.c.nt else ''
    def spin_init(self): self.e(f's_mov_b32 s{sSPIN}, {self.c.spin}')
    def spin_back(self, top):
        done = self.lab('L_ok')
        self.e(f'''s_cbranch_vccz {done}
                   s_sub_u32 s{sSPIN}, s{sSPIN}, 1
                   s_cbranch_scc0 {top}
                   {done}:''')
    def dma_loop(self, n, vaddr, srdb, sOff, dOff, dM0):
        top = self.lab('L_dma')
        self.e(f'''s_mov_b32 s{sCNT}, {n-1}
                   {top}:
                   buffer_load_dwordx4 v{vaddr}, {srd(srdb)}, s{sOff} offen{self.NT} lds
                   s_add_u32 m0, m0, {dM0}
                   s_add_u32 s{sOff}, s{sOff}, {dOff}
                   s_sub_u32 s{sCNT}, s{sCNT}, 1
                   s_cbranch_scc0 {top}''')
    def swap_reduce(self, v0, v1, v2, v3):
        self.e(f'''s_nop 1
                   v_permlane32_swap_b32 v{v0}, v{v2}
                   v_permlane32_swap_b32 v{v1}, v{v3}
                   v_add_f32 v{v0}, v{v0}, v{v2}
                   v_add_f32 v{v1}, v{v1}, v{v3}
                   s_nop 1
                   v_permlane16_swap_b32 v{v0}, v{v1}
                   v_add_f32 v{v0}, v{v0}, v{v1}''')
    def allreduce(self, op, v, t):
        for k in (1, 2, 4, 8):
            self.e(f'''s_nop 1
                       {op}_dpp v{v}, v{v}, v{v} row_ror:{k} row_mask:0xf bank_mask:0xf''')
        for sw in ('16', '32'):
            self.e(f'''v_mov_b32 v{t}, v{v}
                       s_nop 1
                       v_permlane{sw}_swap_b32 v{v}, v{t}
                       {op} v{v}, v{v}, v{t}''')

    def prologue(self):
        e = self.e
        e(f'''s_cmp_ge_u32 s2, 256
              s_cbranch_scc1 L_exit''')
        self.stamp(0)
        for b, off in ((sX, 0), (sWQ, 16), (sCKV, 8), (sWUK, 24), (sWS, 88), (sWUV, 32), (sWO, 40)):
            e(f's_load_dwordx2 s[{b}:{b+1}], s[0:1], {off}')
        e('''v_lshrrev_b32 v1, 6, v0
             v_and_b32 v0, 63, v0''')
        e(f'v_readfirstlane_b32 s{sW}, v1')
        e('''v_and_b32 v1, 15, v0
             v_lshrrev_b32 v2, 4, v0''')
        for b, sz in ((sX, 1152), (sCKV, 8192*1024), (sWQ, 576*8192), (sWUK, 512*8192), (sWUV, 512*8192),
                      (sWO, 4096*1152), (sW1, 576*9216), (sW2, 4608*1152), (sOUT, 1152), (sWS, WS_SIZE)):
            e(f'''s_mov_b32 s{b+2}, {sz}
                  s_mov_b32 s{b+3}, 0x20000''')
        e(f'''s_and_b32 s{sXC}, s2, 7
              s_lshr_b32 s{sY}, s2, 3
              s_lshr_b32 s{sH}, s{sY}, 2
              s_lshl_b32 s{sT0}, s{sXC}, 2
              s_add_u32 s{sH}, s{sH}, s{sT0}
              s_and_b32 s{sJ}, s{sY}, 3
              s_waitcnt lgkmcnt(0)''')
        for b, off in ((sW1, 56), (sW2, 64), (sOUT, 72)):
            e(f's_load_dwordx2 s[{b}:{b+1}], s[0:1], {off}')
        e(f'''s_load_dword s{sTAG}, s[{sWS}:{sWS+1}], 0
              s_cmp_ge_u32 s{sY}, 16
              s_cbranch_scc1 L_X
              s_cmp_lg_u32 s{sW}, 0
              s_cbranch_scc1 L_Y_not0''')
    def get_tag(self):
        self.e(f'''s_waitcnt lgkmcnt(0)
                   s_or_b32 s{sTAG}, s{sTAG}, 0x40004000
                   s_add_u32 s{sTAG}, s{sTAG}, 1
                   s_and_b32 s{sTAG}, s{sTAG}, 0xbfffbfff''')

    def s1a(self):
        e = self.e
        XS, X1, XR, SEL, A0, D, WQ = 8, 12, 16, 40, 48, 56, 112
        e(f'''v_lshlrev_b32 v5, 4, v0
              v_lshlrev_b32 v6, 2, v0
              s_mul_i32 s{sT0}, s{sJ}, 288
              v_mul_u32_u24 v4, 72, v2
              buffer_load_dwordx4 {vr(XS)}, v5, {srd(sX)}, 0 offen
              buffer_load_dword v{X1}, v6, {srd(sX)}, 0 offen offset:1024''')
        for k in range(4):
            e(f'buffer_load_dwordx4 {vr(XR+4*k)}, v4, {srd(sX)}, s{sT0} offen offset:{16*k}')
        e(f'buffer_load_dwordx2 {vr(XR+16,2)}, v4, {srd(sX)}, s{sT0} offen offset:64')
        e(f'''v_mul_u32_u24 v7, {36*8192}, v2
              v_lshl_add_u32 v7, v1, 4, v7
              s_mul_i32 s{sT1}, s{sJ}, {144*8192}
              s_lshl_b32 s{sT2}, s{sH}, 8
              s_add_u32 s{sT1}, s{sT1}, s{sT2}''')
        for t in range(36):
            e(f'buffer_load_dwordx4 {vr(WQ+4*t)}, v7, {srd(sWQ)}, s{sT1} offen{self.NT}')
            if t < 35: e(f's_add_u32 s{sT1}, s{sT1}, 8192')
        e('s_barrier')
        self.stamp(1)
        e(f'''v_and_b32 v34, 2, v1
              v_cmp_ne_u32 vcc, 0, v34
              v_mov_b32 v35, 0x0504
              v_mov_b32 v36, 0x0706
              v_mov_b32 v37, 0x0100
              v_cndmask_b32 v35, v35, v37, vcc
              v_cndmask_b32 v36, v36, v37, vcc
              v_and_b32 v34, 1, v1
              v_lshlrev_b32 v34, 4, v34
              v_xor_b32 v35, 0x0c0c, v35
              v_xor_b32 v36, 0x0c0c, v36
              v_lshlrev_b32 v35, v34, v35
              v_lshlrev_b32 v36, v34, v36
              v_xor_b32 v35, 0x0c0c0c0c, v35
              v_xor_b32 v36, 0x0c0c0c0c, v36
              v_mov_b32 v37, 0x0c0c0c0c
              v_lshrrev_b32 v34, 2, v1''')
        for rho in range(4):
            e(f'''v_cmp_eq_u32 vcc, {rho}, v34
                  s_nop 1
                  v_cndmask_b32 v{SEL+rho}, v37, v35, vcc
                  v_cndmask_b32 v{SEL+4+rho}, v37, v36, vcc''')
        e(f'''v_mov_b32 v38, 0x3f803f80
              v_mov_b32 v34, 0
              v_mov_b32 v35, 0''')
        e(f'''s_lshl_b32 s{sT2}, s{sH}, 12
              s_lshl_b32 s{sT3}, s{sJ}, 10
              s_add_u32 s{sT2}, s{sT2}, s{sT3}
              s_add_u32 s{sT2}, s{sT2}, {H1}''')
        e('s_waitcnt vmcnt(41)')
        for k in range(5):
            e(f'''v_dot2_f32_bf16 v34, v{XS+k}, v38, v34
                  v_dot2_f32_bf16 v35, v{XS+k}, v{XS+k}, v35''')
        e('s_nop 2')
        for k in (1, 2, 4, 8):
            e(f'''v_add_f32_dpp v34, v34, v34 row_ror:{k} row_mask:0xf bank_mask:0xf
                  v_add_f32_dpp v35, v35, v35 row_ror:{k} row_mask:0xf bank_mask:0xf
                  s_nop 0''')
        for sw in ('16', '32'):
            e(f'''v_mov_b32 v36, v34
                  v_mov_b32 v37, v35
                  s_nop 0
                  v_permlane{sw}_swap_b32 v34, v36
                  v_permlane{sw}_swap_b32 v35, v37
                  v_add_f32 v34, v34, v36
                  v_add_f32 v35, v35, v37''')
        cs = math.log2(math.e) / math.sqrt(128.0)
        e(f'''v_mul_f32 v34, {hex(f2u(1/576))}, v34
              v_mul_f32 v35, {hex(f2u(1/576))}, v35
              v_fma_f32 v35, -v34, v34, v35
              v_add_f32 v35, {hex(f2u(1e-5))}, v35
              v_rsq_f32 v35, v35
              s_waitcnt vmcnt(36)
              v_mul_f32 v35, {hex(f2u(cs))}, v35''')
        def perm(t):
            for rho in range(4):
                e(f'v_perm_b32 v{A0+4*(t&1)+rho}, v{XR+(t>>1)}, v38, v{SEL+4*(t&1)+rho}')
        perm(0)
        for t in range(36):
            if t < 35: perm(t+1)
            else: self.get_tag()
            e(f's_waitcnt vmcnt({35-t})')
            e(f'v_mfma_f32_16x16x32_bf16 {vr(D)}, {vr(A0+4*(t&1))}, {vr(WQ+4*t)}, {vr(D) if t else 0}')
        self.stamp(2)
        e(f'''v_mov_b32 v62, s{sTAG}
              v_mov_b32 v63, s{sTAG}
              s_nop 5
              v_fma_f32 v60, -v34, v{D+2}, v{D}
              v_fma_f32 v61, -v34, v{D+3}, v{D+1}
              v_mul_f32 v60, v60, v35
              v_mul_f32 v61, v61, v35
              buffer_store_dwordx4 v[60:63], v5, {srd(sWS)}, s{sT2} offen sc1''')
        self.stamp(3)
        e('s_branch L_Y_lo')

    def y_rest(self):
        e = self.e
        e(f'''L_Y_not0:
              s_cmp_ge_u32 s{sW}, 4
              s_cbranch_scc1 L_S1b''')
        if self.c.prefetch_code:
            sk = self.lab('L_nopf')
            e(f'''s_cmp_lg_u32 s{sW}, 1
                  s_cbranch_scc1 {sk}
                  s_getpc_b64 s[{sT0}:{sT1}]
                  L_pc:
                  s_sub_u32 s{sT0}, s{sT0}, L_pc-{KN}
                  s_subb_u32 s{sT1}, s{sT1}, 0
                  v_lshlrev_b32 v4, 7, v0
                  v_min_u32 v5, L_codeend-{KN}-4, v4
                  global_load_dword v250, v5, s[{sT0}:{sT1}]
                  v_add_u32 v4, 8192, v4
                  v_min_u32 v5, L_codeend-{KN}-4, v4
                  global_load_dword v251, v5, s[{sT0}:{sT1}]
                  {sk}:''')
        e('s_barrier')
        self.get_tag()
        e('s_branch L_Y_lo')

    def s1b(self):
        e = self.e
        W, G, V, D = 16, 48, 64, 80
        e('L_S1b:')
        sk = self.lab('L_noclr')
        e(f'''s_cmp_lg_u32 s{sW}, 4
              s_cbranch_scc1 {sk}
              s_lshl_b32 s{sT0}, s{sH}, 2
              s_add_u32 s{sT0}, s{sT0}, s{sJ}
              s_lshl_b32 s{sT0}, s{sT0}, 9
              s_add_u32 s{sT0}, s{sT0}, {H4}
              s_mul_i32 s{sT1}, s{sXC}, 1152
              s_lshl_b32 s{sT2}, s{sY}, 7
              s_add_u32 s{sT1}, s{sT1}, s{sT2}
              s_add_u32 s{sT1}, s{sT1}, {H56-512}
              s_cmp_lt_u32 s{sY}, 9
              s_cselect_b32 s{sT1}, s{sT1}, {OOB}
              v_mov_b32 v4, s{sT0}
              v_mov_b32 v5, s{sT1}
              v_mov_b32 v6, {OOB}
              v_cmp_gt_u32 vcc, 40, v0
              v_mov_b32 v8, -1
              v_mov_b32 v9, -1
              v_cndmask_b32 v5, v6, v5, vcc
              v_cmp_gt_u32 vcc, 32, v0
              v_mov_b32 v10, -1
              v_mov_b32 v11, -1
              v_cndmask_b32 v4, v5, v4, vcc
              v_lshl_add_u32 v4, v0, 4, v4
              buffer_store_dwordx4 v[8:11], v4, {srd(sWS)}, 0 offen sc1
              {sk}:''')
        e(f'''s_sub_u32 s{sT4}, s{sW}, 4
              v_lshrrev_b32 v4, 5, v0
              v_xor_b32 v4, v4, v1
              v_lshlrev_b32 v4, 4, v4
              v_lshl_add_u32 v4, v2, 13, v4
              s_lshl_b32 s{sT0}, s{sJ}, 2
              s_add_u32 s{sT0}, s{sT0}, s{sT4}
              s_lshl_b32 s{sT5}, s{sT0}, 7
              s_lshl_b32 s{sT0}, s{sT0}, 18
              s_lshl_b32 s{sT1}, s{sH}, 8
              s_add_u32 s{sT0}, s{sT0}, s{sT1}
              s_lshl_b32 s{sT1}, s{sT4}, 13
              s_add_u32 s{sT1}, s{sT1}, {L_WUK}
              s_mov_b32 m0, s{sT1}''')
        e(f'''v_and_b32 v5, 1, v2
              v_lshlrev_b32 v5, 1, v5
              v_xor_b32 v5, v5, v2
              v_lshlrev_b32 v5, 2, v5''')
        e('s_barrier')
        for i in range(8):
            if i: e(f'v_xor_b32 v6, {32*i}, v4')
            e(f'buffer_load_dwordx4 v{6 if i else 4}, {srd(sWUK)}, s{sT0} offen{self.NT} lds')
            if i < 7:
                e(f'''s_add_u32 m0, m0, 1024
                      s_add_u32 s{sT0}, s{sT0}, 32768''')
        self.stamp(1)
        e(f'''v_xor_b32 v6, v5, v1
              v_lshlrev_b32 v6, 4, v6
              v_lshl_add_u32 v6, v1, 9, v6
              v_add_u32 v8, s{sT1}, v6''')
        for s in range(1, 4): e(f'v_xor_b32 v{8+s}, {16*s}, v8')
        e(f'''v_lshrrev_b32 v6, 2, v1
              v_lshlrev_b32 v6, 4, v6
              v_and_b32 v7, 3, v1
              v_add3_u32 v6, v6, v5, v7
              v_lshlrev_b32 v12, 4, v6
              s_lshl_b32 s{sT2}, s{sH}, 12
              s_add_u32 s{sT2}, s{sT2}, {H1}''')
        e(f'''v_lshlrev_b32 v13, 3, v0
              v_mov_b32 v6, {OOB}
              v_cmp_gt_u32 vcc, 16, v0
              s_lshl_b32 s{sT3}, s{sH}, 11
              s_add_u32 s{sT3}, s{sT3}, s{sT5}
              s_add_u32 s{sT3}, s{sT3}, {H2}
              v_cndmask_b32 v13, v6, v13, vcc''')
        self.get_tag()
        e(f'v_mov_b32 v15, s{sTAG}')
        self.spin_init()
        def loads():
            for p in range(4):
                e(f'buffer_load_dwordx4 {vr(G+4*p)}, v12, {srd(sWS)}, s{sT2} offen offset:{1024*p} sc1')
        e(f's_waitcnt vmcnt({self.c.s1b_n})')
        loads()
        e('s_waitcnt vmcnt(4)')
        self.stamp(2)
        for t in range(2):
            for s in range(4):
                e(f'ds_read_b128 {vr(W+16*t+4*s)}, v{8+s} offset:{256*t}')
        chk = self.lab('L_chk'); top = self.lab('L_poll')
        e(f's_branch {chk}\n{top}:')
        loads()
        e(f'''{chk}:
              s_waitcnt vmcnt(0)
              v_bitop3_b32 v6, v{G+2}, v{G+6}, v15 bitop3:0x7e
              v_bitop3_b32 v7, v{G+10}, v{G+14}, v15 bitop3:0x7e
              v_or_b32 v6, v6, v7
              v_cmp_ne_u32 vcc, 0, v6''')
        self.spin_back(top)
        self.stamp(3)
        e(f'''v_pk_add_f32 {vr(G,2)}, {vr(G,2)}, {vr(G+4,2)}
              v_pk_add_f32 {vr(G+8,2)}, {vr(G+8,2)}, {vr(G+12,2)}
              v_pk_add_f32 {vr(G,2)}, {vr(G,2)}, {vr(G+8,2)}
              v_cvt_pk_bf16_f32 v6, v{G}, v{G+1}
              s_waitcnt lgkmcnt(0)
              s_nop 0''')
        def bc(s):
            for u in range(4):
                e(f'v_mov_b32_dpp v{V+4*s+u}, v6 row_newbcast:{4*u+s} row_mask:0xf bank_mask:0xf')
        bc(0)
        for s in range(4):
            if s < 3: bc(s+1)
            for t in range(2):
                e(f'v_mfma_f32_16x16x32_bf16 {vr(D+4*t)}, {vr(V+4*s)}, {vr(W+16*t+4*s)}, {vr(D+4*t) if s else 0}')
        e(f'''s_nop 7
              v_cvt_pk_bf16_f32 v14, v{D}, v{D+4}
              buffer_store_dwordx2 v[14:15], v13, {srd(sWS)}, s{sT3} offen sc1''')
        self.stamp(4)
        e('s_barrier')
        e(f'''s_cmp_lt_u32 s{sY}, 9
              s_cbranch_scc1 L_S3b
              s_cmp_lt_u32 s{sY}, 11
              s_cbranch_scc1 L_Yhi_S4
              s_cmp_ge_u32 s{sY}, 14
              s_cbranch_scc1 L_end
              s_cmp_eq_u32 s{sW}, 4
              s_cbranch_scc1 L_FIN
              L_end:''')
        self.end()
        e(f'''L_Yhi_S4:
              s_cmp_ge_u32 s{sW}, 6
              s_cbranch_scc1 L_end
              s_add_u32 s{sU}, s{sY}, 7''')
        self.s4_issue()
        e('''s_barrier
             s_branch L_S4''')

    def s3a(self):
        e = self.e
        B, PL, A, D, F, MK = 16, 48, 64, 80, 88, 104
        e('L_Y_lo:')
        e(f'''v_lshrrev_b32 v4, 2, v0
              v_and_b32 v5, 3, v0
              v_lshlrev_b32 v4, 13, v4
              v_lshl_add_u32 v4, v5, 4, v4
              s_lshl_b32 s{sT0}, s{sJ}, 20
              s_lshl_b32 s{sT1}, s{sH}, 8
              s_add_u32 s{sT0}, s{sT0}, s{sT1}
              s_lshl_b32 s{sT1}, s{sW}, 6
              s_add_u32 s{sT0}, s{sT0}, s{sT1}
              s_mul_i32 s{sT1}, s{sW}, 10240
              s_add_u32 s{sT1}, s{sT1}, {L_WUV}''')
        e('s_barrier')
        self.stamp(4)
        for j in range(8):
            e(f'''s_add_u32 m0, s{sT1}, {j*1280 + (0, 32, 128, 160)[j & 3]}
                  s_nop 0
                  buffer_load_dwordx4 v4, {srd(sWUV)}, s{sT0} offen{self.NT} lds''')
            if j < 7: e(f's_add_u32 s{sT0}, s{sT0}, {16*8192}')
        e(f'''v_lshrrev_b32 v6, 2, v1
              v_mul_u32_u24 v7, 1280, v6
              v_and_b32 v8, 1, v6
              v_lshl_add_u32 v7, v8, 5, v7
              v_lshrrev_b32 v8, 1, v6
              v_lshl_add_u32 v7, v8, 7, v7
              v_lshl_add_u32 v7, v2, 6, v7
              v_lshl_add_u32 v7, v5, 3, v7
              v_add_u32 v7, s{sT1}, v7''')
        sk = self.lab('L_nos4')
        e(f'''s_sub_u32 s{sT2}, s{sY}, 9
              s_cmp_ge_u32 s{sT2}, 2
              s_cbranch_scc1 {sk}
              s_add_u32 s{sU}, s{sY}, 7''')
        self.s4_issue()
        e(f'{sk}:')
        e(f'''v_and_b32 v8, 1, v1
              v_lshlrev_b32 v8, 4, v8
              v_mov_b32 v9, 0xffff
              v_lshlrev_b32 v9, v8, v9
              v_bfe_u32 v8, v1, 1, 2''')
        for rho in range(4):
            e(f'''v_cmp_eq_u32 vcc, {rho}, v8
                  s_nop 1
                  v_cndmask_b32 v{MK+rho}, 0, v9, vcc''')
        e(f'''v_lshlrev_b32 v8, 9, v0
              s_lshl_b32 s{sT2}, s{sH}, 4
              s_add_u32 s{sT2}, s{sT2}, {ST}
              v_lshlrev_b32 v9, 4, v0
              s_lshl_b32 s{sT3}, s{sH}, 2
              s_add_u32 s{sT3}, s{sT3}, s{sJ}
              s_lshl_b32 s{sT3}, s{sT3}, 2
              s_add_u32 s{sT3}, s{sT3}, s{sW}
              s_lshl_b32 s{sT4}, s{sT3}, 7
              s_add_u32 s{sT4}, s{sT4}, {H4}
              s_lshl_b32 s{sT3}, s{sT3}, 12
              s_add_u32 s{sT3}, s{sT3}, {PAY}
              s_lshl_b32 s{sT5}, s{sW}, 6
              v_lshl_add_u32 v10, v2, 2, s{sT5}
              s_mul_i32 s{sT5}, s{sW}, 320
              s_add_u32 s{sT5}, s{sT5}, {L_CB}
              v_and_b32 v11, 1, v2
              v_lshlrev_b32 v11, 3, v11
              v_lshl_add_u32 v11, v1, 4, v11
              v_add_u32 v11, s{sT5}, v11
              v_mul_u32_u24 v12, 320, v5
              v_lshl_add_u32 v12, v2, 4, v12
              v_add_u32 v12, {L_CB}, v12
              v_lshlrev_b32 v13, 2, v0
              v_mov_b32 v14, {OOB}
              v_cmp_gt_u32 vcc, 16, v0
              s_waitcnt vmcnt(0)
              v_mov_b32 v15, -1
              v_cndmask_b32 v13, v14, v13, vcc''')
        self.stamp(5)
        for t in range(2):
            for s in range(4):
                for a in range(2):
                    e(f'ds_read_b64_tr_b16 {vr(B+16*t+4*s+2*a,2)}, v7 offset:{a*5120+s*256+t*32}')
        self.spin_init()
        top = self.lab('L_poll')
        e(f'''{top}:
              buffer_load_dwordx4 {vr(F)}, v8, {srd(sWS)}, s{sT2} offen sc1
              s_waitcnt vmcnt(0)
              v_cmp_ne_u32 vcc, s{sTAG}, v{F+2}''')
        self.spin_back(top)
        def loads():
            for t in range(4):
                e(f'buffer_load_dwordx4 {vr(PL+4*t)}, v9, {srd(sWS)}, s{sT3} offen offset:{1024*t} sc1')
        loads()
        self.stamp(6)
        e(f'v_mov_b32 v{F+4}, v{F}')
        self.allreduce('v_max_f32', F+4, F+5)
        e(f'''v_sub_f32 v{F+4}, v{F}, v{F+4}
              v_exp_f32 v{F+4}, v{F+4}
              s_nop 0
              v_cvt_pk_bf16_f32 v{F+4}, v{F+4}, v{F+4}
              s_waitcnt lgkmcnt(0)''')
        for t in range(4):
            e(f'ds_bpermute_b32 v{F+8+t}, v10, v{F+4} offset:{16*t}')
        e(f'''v_and_b32 v{F+6}, 0xffff0000, v{F+4}
              v_mul_f32 v{F+6}, v{F+6}, v{F+1}''')
        self.allreduce('v_add_f32', F+6, F+5)
        e(f'''v_rcp_f32 v{F+6}, v{F+6}
              s_waitcnt lgkmcnt(0)''')
        for t in range(4):
            for rho in range(4):
                e(f'v_and_b32 v{A+4*t+rho}, v{F+8+t}, v{MK+rho}')
        chk = self.lab('L_chk'); top = self.lab('L_poll')
        self.spin_init()
        e(f's_branch {chk}\n{top}:')
        loads()
        e(f'{chk}:')
        for t in range(4):
            p = PL + 4*t
            e(f's_waitcnt vmcnt({3-t})')
            e(f'v_mfma_f32_16x16x32_bf16 {vr(D)}, {vr(A+4*t)}, {vr(p)}, {vr(D) if t else 0}')
            if t == 0:
                e(f'''v_max3_u32 v6, v{p}, v{p+1}, v{p+2}
                      v_max_u32 v6, v6, v{p+3}''')
            else:
                e(f'''v_max3_u32 v6, v6, v{p}, v{p+1}
                      v_max3_u32 v6, v6, v{p+2}, v{p+3}''')
        e(f'v_cmp_eq_u32 vcc, v15, v6')
        self.spin_back(top)
        self.stamp(7)
        e(f'''s_nop 3
              v_mul_f32 v{D+4}, v{D}, v{F+6}
              v_mul_f32 v{D+5}, v{D+1}, v{F+6}
              v_mul_f32 v{D+6}, v{D+2}, v{F+6}
              v_mul_f32 v{D+7}, v{D+3}, v{F+6}
              v_cvt_pk_bf16_f32 v{D+4}, v{D+4}, v{D+5}
              v_cvt_pk_bf16_f32 v{D+5}, v{D+6}, v{D+7}
              ds_write_b64 v11, {vr(D+4,2)}
              s_waitcnt lgkmcnt(0)
              s_barrier''')
        for s in range(4):
            e(f'ds_read_b128 {vr(A+4*s)}, v12 offset:{64*s}')
        for s in range(4):
            e(f's_waitcnt lgkmcnt({3-s})')
            for t in range(2):
                e(f'v_mfma_f32_16x16x32_bf16 {vr(D+4*t)}, {vr(A+4*s)}, {vr(B+16*t+4*s)}, {vr(D+4*t) if s else 0}')
        e(f'''s_nop 6
              v_add_f32 v{D}, v{D}, v{D+1}
              v_add_f32 v{D+2}, v{D+2}, v{D+3}
              v_add_f32 v{D+4}, v{D+4}, v{D+5}
              v_add_f32 v{D+6}, v{D+6}, v{D+7}
              v_add_f32 v{D}, v{D}, v{D+2}
              v_add_f32 v{D+4}, v{D+4}, v{D+6}
              v_cvt_pk_bf16_f32 v6, v{D}, v{D+4}
              buffer_store_dword v6, v13, {srd(sWS)}, s{sT4} offen sc1''')
        self.stamp(8)
        e(f'''s_sub_u32 s{sT2}, s{sY}, 9
              s_cmp_lt_u32 s{sT2}, 2
              s_cbranch_scc1 L_S4''')
        self.end()

    def s3b(self):
        e = self.e
        B, D, G = 16, 80, 144
        e('L_S3b:')
        e(f'''v_lshrrev_b32 v4, 3, v0
              v_mul_u32_u24 v4, 1152, v4
              v_and_b32 v5, 7, v0
              v_lshl_add_u32 v4, v5, 4, v4
              s_lshl_b32 s{sT0}, s{sXC}, 2
              s_add_u32 s{sT2}, s{sT0}, s{sT4}
              s_mul_i32 s{sT0}, s{sT2}, {128*1152}
              s_lshl_b32 s{sT1}, s{sY}, 7
              s_add_u32 s{sT0}, s{sT0}, s{sT1}
              s_mul_i32 s{sT1}, s{sT4}, 16640
              s_add_u32 m0, s{sT1}, {L_WO}''')
        self.dma_loop(16, 4, sWO, sT0, 8*1152, 1040)
        e(f'''v_bfe_u32 v5, v1, 2, 1
              v_lshl_add_u32 v5, v2, 1, v5
              v_mul_u32_u24 v5, 2080, v5
              v_lshrrev_b32 v6, 3, v1
              v_lshl_add_u32 v5, v6, 7, v5
              v_and_b32 v6, 3, v1
              v_lshl_add_u32 v5, v6, 3, v5
              v_add_u32 v5, s{sT1}, v5''')
        e(f'''v_lshrrev_b32 v7, 2, v1
              v_lshl_add_u32 v7, v7, 2, v2
              v_lshlrev_b32 v7, 7, v7
              v_lshl_add_u32 v7, v6, 4, v7
              s_lshl_b32 s{sT2}, s{sT2}, 11
              s_add_u32 s{sT2}, s{sT2}, {H4}''')
        e(f'''v_lshlrev_b32 v8, 2, v0
              s_lshl_b32 s{sT3}, s{sY}, 7
              s_cmp_eq_u32 s{sXC}, 0
              s_cselect_b32 s{sT5}, s{sT3}, 4096
              v_add_u32 v9, s{sT5}, v8
              buffer_load_dword v12, v9, {srd(sX)}, 0 offen
              s_lshl_b32 s{sT5}, s{sT4}, 8
              s_add_u32 s{sT5}, s{sT5}, {L_EX}
              v_add_u32 v9, s{sT5}, v8
              v_lshlrev_b32 v10, 3, v0
              v_and_b32 v10, 0xff, v10
              v_add_u32 v10, {L_EX}, v10
              v_mov_b32 v11, {OOB}
              v_cmp_gt_u32 vcc, 32, v0
              s_mul_i32 s{sT5}, s{sXC}, 1152
              s_add_u32 s{sT3}, s{sT3}, s{sT5}
              s_add_u32 s{sT3}, s{sT3}, {H56}
              v_cndmask_b32 v8, v11, v8, vcc
              v_mov_b32 v15, -1
              s_waitcnt vmcnt(0)
              v_and_b32 v13, 0xffff0000, v12
              v_lshlrev_b32 v12, 16, v12''')
        self.stamp(5)
        for T in range(4):
            for s in range(4):
                for a in range(2):
                    e(f'ds_read_b64_tr_b16 {vr(B+16*T+4*s+2*a,2)}, v5 offset:{(s>>1)*1040+(4*(s&1)+2*a)*128+T*32}')
        e('''s_waitcnt lgkmcnt(0)
             s_barrier''')
        self.stamp(6)
        self.spin_init()
        top = self.lab('L_poll')
        e(f'''{top}:
              buffer_load_dwordx4 {vr(G)}, v7, {srd(sWS)}, s{sT2} offen sc1
              s_waitcnt vmcnt(0)
              v_max3_u32 v6, v{G}, v{G+1}, v{G+2}
              v_max_u32 v6, v6, v{G+3}
              v_cmp_eq_u32 vcc, v15, v6''')
        self.spin_back(top)
        self.stamp(7)
        def red(T):
            d = D + 16*T
            e(f'''v_add_f32 v{d}, v{d}, v{d+5}
                  v_add_f32 v{d+10}, v{d+10}, v{d+15}
                  v_add_f32 v{d}, v{d}, v{d+10}''')
        for T in range(4):
            for s in range(4):
                e(f'v_mfma_f32_16x16x32_bf16 {vr(D+16*T+4*s)}, {vr(G)}, {vr(B+16*T+4*s)}, 0')
            if T >= 2: red(T-2)
        e('s_nop 0')
        red(2)
        e('s_nop 0')
        red(3)
        self.swap_reduce(D, D+16, D+32, D+48)
        e(f'''ds_write_b32 v9, v{D}
              s_waitcnt lgkmcnt(0)
              s_barrier
              s_cmp_lg_u32 s{sW}, 4
              s_cbranch_scc1 L_end
              ds_read2_b64 {vr(D)}, v10 offset0:0 offset1:32
              ds_read2_b64 {vr(D+4)}, v10 offset0:64 offset1:96
              s_waitcnt lgkmcnt(1)
              v_pk_add_f32 v[12:13], v[12:13], {vr(D,2)}
              v_pk_add_f32 v[12:13], v[12:13], {vr(D+2,2)}
              s_waitcnt lgkmcnt(0)
              v_pk_add_f32 {vr(D+4,2)}, {vr(D+4,2)}, {vr(D+6,2)}
              v_pk_add_f32 v[12:13], v[12:13], {vr(D+4,2)}
              v_cvt_pk_bf16_f32 v6, v12, v13
              buffer_store_dword v6, v8, {srd(sWS)}, s{sT3} offen sc1''')
        self.stamp(8)
        self.end()

    def s4_issue(self):
        e = self.e
        sk = self.lab('L_now1')
        e(f'''s_mul_i32 s{sT2}, s{sXC}, 18
              s_add_u32 s{sU}, s{sU}, s{sT2}
              s_cmp_ge_u32 s{sW}, 3
              s_cbranch_scc1 {sk}
              v_lshrrev_b32 v120, 2, v0
              v_mul_u32_u24 v120, 9216, v120
              v_and_b32 v121, 3, v0
              v_lshl_add_u32 v120, v121, 4, v120
              s_mul_i32 s{sT2}, s{sW}, {192*9216}
              s_lshl_b32 s{sT3}, s{sU}, 6
              s_add_u32 s{sT2}, s{sT2}, s{sT3}
              s_mul_i32 s{sT3}, s{sW}, {12*1056}
              s_add_u32 m0, s{sT3}, {L_W1}''')
        self.dma_loop(12, 120, sW1, sT2, 16*9216, 1056)
        e(f'{sk}:')
        for i in range(3):
            e(f'''v_add_u32 v120, {64*i}, v0
                  v_mul_u32_u24 v121, 5462, v120
                  v_lshrrev_b32 v121, 16, v121
                  v_mul_u32_u24 v121, {1152-192}, v121
                  v_lshl_add_u32 v{122+i}, v120, 4, v121''')
        e(f'''s_mul_i32 s{sT2}, s{sU}, {32*1152}
              s_mul_i32 s{sT3}, s{sW}, 192
              s_add_u32 s{sT2}, s{sT2}, s{sT3}
              s_mul_i32 s{sT3}, s{sW}, 6144
              s_add_u32 m0, s{sT3}, {L_W2}''')
        for i in range(6):
            if i == 3: e(f's_add_u32 s{sT2}, s{sT2}, {16*1152}')
            else: e('s_nop 0')
            e(f'buffer_load_dwordx4 v{122+i%3}, {srd(sW2)}, s{sT2} offen{self.NT} lds')
            if i < 5: e('s_add_u32 m0, m0, 1024')

    def clear_check(self, va, g):
        e = self.e
        top = self.lab('L_poll')
        self.spin_init()
        e(f'''v_lshlrev_b32 v{va}, 9, v0
              s_mov_b32 s{sT2}, {H2}
              s_mov_b32 s{sT3}, {H2+32768}
              v_mov_b32 v{g+4}, s{sTAG}
              {top}:
              buffer_load_dwordx2 {vr(g,2)}, v{va}, {srd(sWS)}, s{sT2} offen sc1
              buffer_load_dwordx2 {vr(g+2,2)}, v{va}, {srd(sWS)}, s{sT3} offen sc1
              s_waitcnt vmcnt(0)
              v_bitop3_b32 v{g}, v{g+1}, v{g+3}, v{g+4} bitop3:0x7e
              v_cmp_ne_u32 vcc, 0, v{g}''')
        self.spin_back(top)

    def s4(self):
        e = self.e
        B2, B1, ONE, Lr, GR, RS, D, A = 16, 40, 88, 92, 104, 108, 112, 128
        e('L_S4:')
        self.stamp(9)
        e(f'''v_lshrrev_b32 v4, 2, v1
              v_and_b32 v5, 3, v1
              v_lshl_add_u32 v6, v2, 3, v4
              v_mul_u32_u24 v6, 192, v6
              v_lshl_add_u32 v6, v5, 3, v6
              s_mul_i32 s{sT0}, s{sW}, 6144
              s_add_u32 s{sT0}, s{sT0}, {L_W2}
              v_add_u32 v6, s{sT0}, v6
              v_and_b32 v7, 7, v1
              v_lshl_add_u32 v7, v2, 3, v7
              v_lshlrev_b32 v7, 2, v7
              v_add_u32 v7, {L_EX}, v7
              v_mov_b32 v8, {L_EX}
              v_lshlrev_b32 v9, 4, v0
              v_mov_b32 v10, {OOB}
              v_cmp_gt_u32 vcc, 16, v0
              s_mul_i32 s{sT4}, s{sU}, 1536
              s_lshl_b32 s{sT0}, s{sW}, 8
              s_add_u32 s{sT4}, s{sT4}, s{sT0}
              s_add_u32 s{sT4}, s{sT4}, {H7}
              v_cndmask_b32 v9, v10, v9, vcc
              s_cmp_ge_u32 s{sW}, 3
              s_cbranch_scc1 L_S4_hi''')
        self.clear_check(10, Lr)
        self.stamp(10)
        e(f'''v_mul_u32_u24 v10, 1056, v2
              v_lshl_add_u32 v10, v4, 6, v10
              v_lshl_add_u32 v10, v5, 3, v10
              s_mul_i32 s{sT0}, s{sW}, {12*1056}
              s_add_u32 s{sT0}, s{sT0}, {L_W1}
              v_add_u32 v10, s{sT0}, v10''')
        for b in range(3):
            for s in range(2):
                for t in range(2):
                    for a in range(2):
                        e(f'ds_read_b64_tr_b16 {vr(B1+16*b+8*s+4*t+2*a,2)}, v10 offset:{4*b*1056+(8*s+4*a)*64+t*32}')
        def w2reads():
            for t in range(6):
                for a in range(2):
                    e(f'ds_read_b64_tr_b16 {vr(B2+4*t+2*a,2)}, v6 offset:{4*a*192+t*32}')
        w2reads()
        for k in range(4): e(f'v_mov_b32 v{ONE+k}, 0x3f803f80')
        e(f'''v_lshrrev_b32 v11, 1, v1
              v_mul_u32_u24 v11, 1152, v11
              v_and_b32 v12, 1, v1
              v_cmp_ne_u32 s[{sT2}:{sT3}], 0, v12
              v_lshl_add_u32 v12, v2, 1, v12
              v_lshl_add_u32 v11, v12, 4, v11
              s_mul_i32 s{sT1}, s{sW}, 384
              s_add_u32 s{sT1}, s{sT1}, {H56}
              s_lshl_b32 s{sT0}, s{sW}, 8
              s_add_u32 s{sT0}, s{sT0}, {L_EX}
              v_lshl_add_u32 v12, v0, 2, s{sT0}
              v_mov_b32 v15, -1
              s_waitcnt lgkmcnt(0)''')
        for b in range(3):
            for s in range(2):
                for t in range(2):
                    e(f'v_mfma_f32_16x16x32_bf16 {vr(D+4*t)}, {vr(ONE)}, {vr(B1+16*b+8*s+4*t)}, {vr(D+4*t) if (b or s) else 0}')
        e(f'''v_cmp_gt_u32 vcc, 16, v0
              s_nop 6
              v_cndmask_b32 v13, v{D+4}, v{D}, vcc
              ds_write_b32 v12, v13 offset:{L_CS-L_EX}
              s_waitcnt lgkmcnt(0)
              s_barrier''')
        def csread():
            e(f'''ds_read2st64_b32 v[{A}:{A+1}], v7 offset0:{(L_CS-L_EX)//256} offset1:{(L_CS-L_EX)//256+1}
                  ds_read_b32 v14, v7 offset:{L_CS-L_EX+512}
                  s_waitcnt lgkmcnt(0)
                  v_add_f32 v14, v14, v{A}
                  v_add_f32 v14, v14, v{A+1}''')
        csread()
        self.stamp(11)
        self.spin_init()
        top = self.lab('L_poll')
        e(f'{top}:')
        for b in range(3):
            e(f'buffer_load_dwordx4 {vr(Lr+4*b)}, v11, {srd(sWS)}, s{sT1} offen offset:{128*b} sc1')
        e(f'''s_waitcnt vmcnt(0)
              v_max3_u32 v13, v{Lr}, v{Lr+1}, v{Lr+2}''')
        for k in range(3, 11, 2):
            e(f'v_max3_u32 v13, v13, v{Lr+k}, v{Lr+k+1}')
        e(f'''v_max_u32 v13, v13, v{Lr+11}
              v_cmp_eq_u32 vcc, v15, v13''')
        self.spin_back(top)
        self.stamp(12)
        for b in range(3):
            e(f'v_mfma_f32_16x16x32_bf16 {vr(GR)}, {vr(Lr+4*b)}, {vr(Lr+4*b)}, {vr(GR) if b else 0}')
        for b in range(3):
            e(f'v_mfma_f32_16x16x32_bf16 {vr(RS)}, {vr(Lr+4*b)}, {vr(ONE)}, {vr(RS) if b else 0}')
        fill = [None]*12
        fill[4] = f'v_add_f32 v{GR}, v{GR}, v{GR+2}\nv_add_f32 v{GR+1}, v{GR+1}, v{GR+3}'
        fill[5] = f'v_cndmask_b32 v{GR}, v{GR}, v{GR+1}, s[{sT2}:{sT3}]\nv_add_f32 v{RS}, v{RS}, v{RS+1}'
        fill[6] = f'v_add_f32_dpp v{GR}, v{GR}, v{GR} row_ror:1 row_mask:0xf bank_mask:0xf\nv_add_f32 v{RS+2}, v{RS+2}, v{RS+3}'
        fill[7] = f'v_add_f32_dpp v{GR}, v{GR}, v{GR} row_ror:2 row_mask:0xf bank_mask:0xf\nv_add_f32 v{RS}, v{RS}, v{RS+2}'
        fill[8] = f'v_add_f32_dpp v{GR}, v{GR}, v{GR} row_ror:4 row_mask:0xf bank_mask:0xf'
        fill[10] = f'v_add_f32_dpp v{GR}, v{GR}, v{GR} row_ror:8 row_mask:0xf bank_mask:0xf'
        k = 0
        for t in range(2):
            for s in range(2):
                for b in range(3):
                    d = D + 8*t + 4*s
                    e(f'v_mfma_f32_16x16x32_bf16 {vr(d)}, {vr(Lr+4*b)}, {vr(B1+16*b+8*s+4*t)}, {vr(d) if b else 0}')
                    if fill[k]: e(fill[k])
                    k += 1
        e(f'''v_add_f32 v{D}, v{D}, v{D+2}
              v_add_f32 v{D+5}, v{D+5}, v{D+7}
              v_add_f32 v{D}, v{D}, v{D+5}
              s_nop 1
              v_add_f32 v{D+8}, v{D+8}, v{D+10}
              s_nop 1
              v_add_f32 v{D+13}, v{D+13}, v{D+15}
              v_add_f32 v{D+8}, v{D+8}, v{D+13}''')
        self.swap_reduce(D, D+8, RS, GR)
        e(f'''ds_write_b32 v12, v{D}
              s_waitcnt lgkmcnt(0)
              s_branch L_S4_p2''')
        e('''L_S4_hi:
             s_waitcnt vmcnt(0)''')
        w2reads()
        e('''s_waitcnt lgkmcnt(0)
             s_barrier''')
        csread()
        e('L_S4_p2:')
        e(f'''s_barrier
              ds_read2_b32 v[{A}:{A+1}], v8 offset0:32 offset1:48
              ds_read2_b32 v[{A+2}:{A+3}], v8 offset0:96 offset1:112
              ds_read2_b32 v[{A+4}:{A+5}], v8 offset0:160 offset1:176
              ds_read2st64_b32 v[{A+6}:{A+7}], v7 offset0:0 offset1:1
              ds_read_b32 v{A+8}, v7 offset:512''')
        self.stamp(13)
        e(f'''v_mov_b32 v{A+10}, {hex(f2u(1/576))}
              v_mov_b32 v{A+11}, {hex(f2u(1/576))}
              v_mov_b32 v{A+15}, s{sTAG}
              s_waitcnt lgkmcnt(2)
              v_pk_add_f32 v[{A}:{A+1}], v[{A}:{A+1}], v[{A+2}:{A+3}]
              v_pk_add_f32 v[{A}:{A+1}], v[{A}:{A+1}], v[{A+4}:{A+5}]
              v_pk_mul_f32 v[{A}:{A+1}], v[{A}:{A+1}], v[{A+10}:{A+11}]
              v_fma_f32 v{A+1}, -v{A}, v{A}, v{A+1}
              v_add_f32 v{A+1}, {hex(f2u(1e-5))}, v{A+1}
              v_rsq_f32 v{A+1}, v{A+1}
              s_waitcnt lgkmcnt(0)
              v_add_f32 v{A+6}, v{A+6}, v{A+7}
              v_fma_f32 v{A+8}, -v{A}, v14, v{A+8}
              v_add_f32 v{A+6}, v{A+6}, v{A+8}
              v_mul_f32 v{A+6}, v{A+6}, v{A+1}
              v_mul_f32 v{A+7}, {hex(f2u(-math.log2(math.e)))}, v{A+6}
              v_exp_f32 v{A+7}, v{A+7}
              s_nop 0
              v_add_f32 v{A+7}, 1.0, v{A+7}
              v_rcp_f32 v{A+7}, v{A+7}
              s_nop 0
              v_mul_f32 v{A+6}, v{A+6}, v{A+7}
              s_nop 1
              v_mov_b32_dpp v{A+7}, v{A+6} quad_perm:[1,1,3,3] row_mask:0xf bank_mask:0xf
              v_cvt_pk_bf16_f32 v{A+6}, v{A+6}, v{A+7}
              s_nop 1''')
        for rho in range(4):
            e(f'v_mov_b32_dpp v{A+rho}, v{A+6} row_newbcast:{2*rho} row_mask:0xf bank_mask:0xf')
        e('s_nop 1')
        O = 144
        for t in range(6):
            e(f'v_mfma_f32_16x16x32_bf16 {vr(O+4*t)}, {vr(A)}, {vr(B2+4*t)}, 0')
        e(f'''s_nop 3
              v_cvt_pk_bf16_f32 v{A+12}, v{O}, v{O+4}
              s_nop 0
              v_cvt_pk_bf16_f32 v{A+13}, v{O+8}, v{O+12}
              s_nop 0
              v_cvt_pk_bf16_f32 v{A+14}, v{O+16}, v{O+20}
              buffer_store_dwordx4 {vr(A+12)}, v9, {srd(sWS)}, s{sT4} offen sc1''')
        self.stamp(14)
        self.end()

    def fin(self):
        e = self.e
        G, HF, A, D = 16, 56, 64, 68
        e('''L_FIN:
             s_barrier''')
        self.clear_check(4, G)
        e(f'''s_mul_i32 s{sT0}, s{sXC}, 3
              s_add_u32 s{sT0}, s{sT0}, s{sY}
              s_sub_u32 s{sU}, s{sT0}, 11
              s_lshr_b32 s{sT0}, s{sU}, 2
              s_and_b32 s{sT1}, s{sU}, 3
              s_mul_i32 s{sT2}, s{sT0}, 192
              s_lshl_b32 s{sT3}, s{sT1}, 3
              s_add_u32 s{sT2}, s{sT2}, s{sT3}
              s_add_u32 s{sT3}, s{sT2}, {H56}
              s_lshl_b32 s{sT4}, s{sU}, 6
              s_add_u32 s{sT4}, s{sT4}, {H7}
              v_lshrrev_b32 v4, 2, v1
              v_and_b32 v5, 3, v1
              v_lshl_add_u32 v6, v4, 2, v2
              v_mul_u32_u24 v7, 1152, v6
              v_lshl_add_u32 v7, v5, 1, v7
              v_mov_b32 v8, {OOB}
              v_cmp_gt_u32 vcc, 2, v4
              v_mul_u32_u24 v9, 1536, v6
              v_lshl_add_u32 v9, v5, 4, v9
              v_cndmask_b32 v7, v8, v7, vcc
              v_lshlrev_b32 v10, 7, v2
              v_lshl_add_u32 v10, v5, 1, v10
              v_cmp_eq_u32 vcc, 0, v4
              v_and_b32 v12, 1, v1
              v_lshlrev_b32 v12, 4, v12
              v_cndmask_b32 v10, v8, v10, vcc
              v_cmp_gt_u32 vcc, 2, v2
              v_mov_b32 v13, 0x3f80
              v_lshlrev_b32 v13, v12, v13
              v_cndmask_b32 v10, v8, v10, vcc
              v_cmp_eq_u32 vcc, 0, v2
              v_lshrrev_b32 v12, 1, v1
              v_mov_b32 v{A+3}, 0
              v_cndmask_b32 v11, v8, v10, vcc''')
        for rho in range(3):
            e(f'''v_cmp_eq_u32 vcc, {rho}, v12
                  s_nop 1
                  v_cndmask_b32 v{A+rho}, 0, v13, vcc''')
        e(f'''v_mov_b32 v14, 0xffff
              v_mov_b32 v15, s{sTAG}''')
        self.spin_init()
        top = self.lab('L_poll')
        e(f'{top}:')
        for t in range(6):
            e(f'buffer_load_ushort v{G+t}, v7, {srd(sWS)}, s{sT3} offen offset:{32*t} sc1')
        e(f'''s_waitcnt vmcnt(0)
              v_max3_u32 v12, v{G}, v{G+1}, v{G+2}
              v_max3_u32 v12, v12, v{G+3}, v{G+4}
              v_max_u32 v12, v12, v{G+5}
              v_cmp_eq_u32 vcc, v14, v12''')
        self.spin_back(top)
        self.stamp(12)
        for k in range(3):
            e(f'v_lshl_or_b32 v{HF+k}, v{G+2*k+1}, 16, v{G+2*k}')
        e(f'v_mov_b32 v{HF+3}, 0')
        for i in range(1, 9):
            e(f'v_add_u32 v{72+i}, {i*16*1536}, v9')
        self.spin_init()
        top = self.lab('L_poll')
        e(f'{top}:')
        for i in range(9):
            e(f'buffer_load_dwordx4 {vr(G+4*i)}, v{72+i if i else 9}, {srd(sWS)}, s{sT4} offen sc1')
        e(f'v_mfma_f32_16x16x32_bf16 {vr(D)}, {vr(A)}, {vr(HF)}, 0')
        for i in range(9):
            e(f's_waitcnt vmcnt({8-i})')
            e(f'v_mfma_f32_16x16x32_bf16 {vr(D)}, {vr(A)}, {vr(G+4*i)}, {vr(D)}')
            if i == 0: e(f'v_xor_b32 v12, v15, v{G+3}')
            else: e(f'v_bitop3_b32 v12, v12, v{G+4*i+3}, v15 bitop3:0xf6')
        e('v_cmp_ne_u32 vcc, 0, v12')
        self.spin_back(top)
        self.stamp(13)
        e('s_nop 4')
        for k in (4, 8):
            for r in range(4):
                e(f'v_add_f32_dpp v{D+r}, v{D+r}, v{D+r} row_ror:{k} row_mask:0xf bank_mask:0xf')
        e(f'''v_cvt_pk_bf16_f32 v12, v{D}, v{D+1}
              v_cvt_pk_bf16_f32 v13, v{D+2}, v{D+3}
              buffer_store_short v12, v10, {srd(sOUT)}, s{sT2} offen
              buffer_store_short_d16_hi v12, v10, {srd(sOUT)}, s{sT2} offen offset:32
              buffer_store_short v13, v11, {srd(sOUT)}, s{sT2} offen offset:64
              buffer_store_short_d16_hi v13, v11, {srd(sOUT)}, s{sT2} offen offset:96''')
        self.stamp(14)
        e(f'''s_cmp_lg_u32 s{sU}, 0
              s_cbranch_scc1 L_end
              v_cmp_eq_u32 vcc, 0, v0
              v_mov_b32 v4, 0
              s_nop 0
              v_cndmask_b32 v4, v8, v4, vcc
              buffer_store_dword v15, v4, {srd(sWS)}, 0 offen''')
        self.end()

    def x_path(self):
        e = self.e
        e(f'''L_X:
              s_sub_u32 s{sY}, s{sY}, 16
              s_lshr_b32 s{sH}, s{sY}, 1
              s_lshl_b32 s{sT0}, s{sXC}, 3
              s_add_u32 s{sH}, s{sH}, s{sT0}
              s_and_b32 s{sJ}, s{sY}, 1
              s_cmp_ge_u32 s{sW}, 4
              s_cbranch_scc1 L_PV''')
        K, Q, D = 128, 64, 16
        e(f'''v_lshlrev_b32 v4, 4, v0
              s_lshl_b32 s{sT0}, s{sH}, 17
              s_lshl_b32 s{sT1}, s{sW}, 15
              s_add_u32 s{sT0}, s{sT0}, s{sT1}
              s_mul_i32 s{sT1}, s{sW}, {32*1040}
              s_mov_b32 m0, s{sT1}''')
        if self.c.stagger:
            e(f'''s_lshl_b32 s{sT2}, s{sJ}, 14
                  s_add_u32 s{sT3}, s{sT0}, s{sT2}''')
            self.dma_loop(16, 4, sCKV, sT3, 1024, 1040)
            e(f'''s_xor_b32 s{sT2}, s{sT2}, 16384
                  s_add_u32 s{sT3}, s{sT0}, s{sT2}''')
            self.dma_loop(16, 4, sCKV, sT3, 1024, 1040)
        else:
            self.dma_loop(32, 4, sCKV, sT0, 1024, 1040)
        self.stamp(1)
        e(f'''v_and_b32 v5, 7, v1
              v_lshrrev_b32 v6, 3, v1
              v_lshl_add_u32 v5, v5, 1, v6
              v_mul_u32_u24 v5, 1040, v5
              v_lshl_add_u32 v5, v2, 8, v5
              v_add_u32 v5, s{sT1}, v5
              v_mul_u32_u24 v6, 1040, v1
              v_lshl_add_u32 v6, v2, 8, v6
              v_add_u32 v6, {L_QA}, v6
              v_lshlrev_b32 v7, 2, v1
              v_add_u32 v7, {L_MX}, v7
              s_lshl_b32 s{sT2}, s{sW}, 10
              s_add_u32 s{sT2}, s{sT2}, {L_PB}
              v_add_u32 v8, s{sT2}, v4
              v_mov_b32 v9, 0xff800000''')
        self.get_tag()
        e('ds_write_b32 v7, v9')
        n = self.c.x_n
        assert n <= 16
        e('s_waitcnt vmcnt(16)')
        for s in range(16): e(f'ds_read_b128 {vr(K+4*s)}, v5 offset:{16*s}')
        e(f'''s_waitcnt vmcnt({n})
              s_barrier''')
        self.stamp(2)
        e('s_waitcnt vmcnt(0)')
        self.stamp(3)
        for s in range(16): e(f'ds_read_b128 {vr(K+64+4*s)}, v5 offset:{16640+16*s}')
        e('''s_waitcnt lgkmcnt(0)
             s_barrier''')
        self.stamp(4)
        PRE = 12
        for s in range(PRE): e(f'ds_read_b128 {vr(Q+4*s)}, v6 offset:{16*s}')
        for s in range(16):
            issued = min(16, PRE + s)
            e(f's_waitcnt lgkmcnt({issued-1-s})')
            for t in range(2):
                e(f'v_mfma_f32_16x16x32_bf16 {vr(D+4*t)}, {vr(K+64*t+4*s)}, {vr(Q+4*s)}, {vr(D+4*t) if s else 0}')
            if PRE + s < 16: e(f'ds_read_b128 {vr(Q+4*(PRE+s))}, v6 offset:{16*(PRE+s)}')
        e(f'''s_nop 6
              v_max3_f32 v9, v{D}, v{D+1}, v{D+2}
              v_max3_f32 v9, v9, v{D+3}, v{D+4}
              v_max3_f32 v9, v9, v{D+5}, v{D+6}
              v_max_f32 v9, v9, v{D+7}
              ds_max_f32 v7, v9
              s_waitcnt lgkmcnt(0)
              s_barrier
              ds_read_b32 v12, v7''')
        self.stamp(5)
        e('s_waitcnt lgkmcnt(0)')
        for k in range(8): e(f'v_sub_f32 v{D+k}, v{D+k}, v12')
        for k in range(8): e(f'v_exp_f32 v{D+k}, v{D+k}')
        for k in range(4): e(f'v_cvt_pk_bf16_f32 v{D+8+k}, v{D+2*k}, v{D+2*k+1}')
        e(f'''ds_write_b128 v8, {vr(D+8)}
              s_waitcnt lgkmcnt(0)
              s_barrier''')
        self.stamp(6)
        sk = self.lab('L_nostat')
        e(f'''s_cmp_lg_u32 s{sW}, 0
              s_cbranch_scc1 {sk}''')
        for s in range(1, 4): e(f'ds_read_b128 {vr(D+8+4*s)}, v8 offset:{1024*s}')
        e(f'''v_mov_b32 v10, 0x3f803f80
              v_mov_b32 v13, 0
              v_mov_b32 v14, s{sTAG}
              v_mov_b32 v15, s{sTAG}
              v_mov_b32 v11, {OOB}
              v_cmp_gt_u32 vcc, 16, v0
              s_lshl_b32 s{sT2}, s{sH}, 9
              s_lshl_b32 s{sT3}, s{sJ}, 8
              s_add_u32 s{sT2}, s{sT2}, s{sT3}
              s_add_u32 s{sT2}, s{sT2}, {ST}
              v_cndmask_b32 v11, v11, v4, vcc''')
        for k in range(16):
            if k in (4, 8, 12): e(f's_waitcnt lgkmcnt({2-(k//4-1)})')
            e(f'v_dot2_f32_bf16 v13, v{D+8+k}, v10, v13')
        e('s_nop 2')
        for sw in ('16', '32'):
            e(f'''v_mov_b32 v9, v13
                  s_nop 1
                  v_permlane{sw}_swap_b32 v13, v9
                  v_add_f32 v13, v13, v9''')
        e(f'buffer_store_dwordx4 v[12:15], v11, {srd(sWS)}, s{sT2} offen sc1')
        self.stamp(7)
        e(f'{sk}:')
        e('s_branch L_X_D')
        V, G, P, DD = 128, 16, 48, 64
        e(f'''L_PV:
              s_sub_u32 s{sT4}, s{sW}, 4
              v_lshlrev_b32 v4, 18, v2
              v_lshl_add_u32 v4, v1, 4, v4
              s_lshl_b32 s{sT0}, s{sJ}, 20
              s_lshl_b32 s{sT1}, s{sT4}, 14
              s_add_u32 s{sT0}, s{sT0}, s{sT1}
              s_lshl_b32 s{sT1}, s{sH}, 8
              s_add_u32 s{sT0}, s{sT0}, s{sT1}
              s_add_u32 s{sT0}, s{sT0}, {PAY}
              s_add_u32 s{sT1}, s{sT0}, 65536
              s_add_u32 s{sT2}, s{sT0}, {2*65536}
              s_add_u32 s{sT3}, s{sT0}, {3*65536}''')
        for k in range(4): e(f'v_mov_b32 v{G+k}, -1')
        for r in range(4): e(f'buffer_store_dwordx4 {vr(G)}, v4, {srd(sWS)}, s{sT0+r} offen sc1')
        e(f'''v_and_b32 v5, 1, v2
              v_lshlrev_b32 v5, 3, v5
              v_lshrrev_b32 v6, 2, v1
              v_lshl_add_u32 v5, v6, 1, v5
              v_lshrrev_b32 v6, 1, v2
              v_add_u32 v5, v5, v6
              v_mul_u32_u24 v5, 1040, v5
              v_and_b32 v6, 3, v1
              v_lshl_add_u32 v5, v6, 3, v5
              s_lshl_b32 s{sT5}, s{sT4}, 8
              v_add_u32 v5, s{sT5}, v5
              v_add_u32 v6, {64*1040}, v5
              v_lshlrev_b32 v7, 4, v0
              v_add_u32 v12, 4096, v7
              v_add_u32 v13, {L_PB}, v7
              s_mul_i32 s{sT5}, s{sT4}, {4*1040}
              s_add_u32 s{sT5}, s{sT5}, {L_QA}
              v_lshl_add_u32 v8, v0, 3, s{sT5}
              v_add_u32 v9, 1040, v8
              v_add_u32 v10, 2080, v8
              v_add_u32 v11, 3120, v8
              s_lshl_b32 s{sT5}, s{sJ}, 15
              s_lshl_b32 s{sU}, s{sT4}, 13
              s_add_u32 s{sT5}, s{sT5}, s{sU}
              s_add_u32 s{sT5}, s{sT5}, {H2}''')
        self.get_tag()
        e(f'v_mov_b32 v15, s{sTAG}')
        self.spin_init()
        def loads():
            for i in range(8):
                e(f'buffer_load_dwordx4 {vr(G+4*i)}, v{7 if i < 4 else 12}, {srd(sWS)}, s{sT5} offen offset:{1024*(i&3)} sc1')
        def trreads(a):
            for s in range(4):
                for T in range(8):
                    e(f'ds_read_b64_tr_b16 {vr(V+16*T+4*s+2*a,2)}, v{5 if s < 2 else 6} offset:{(32*(s&1)+16*a)*1040+32*T}')
        e('s_barrier')
        loads()
        self.stamp(2)
        trreads(0)
        chk = self.lab('L_chk'); top = self.lab('L_poll')
        e(f's_branch {chk}\n{top}:')
        loads()
        e(f'{chk}:')
        for i in range(8):
            e(f's_waitcnt vmcnt({7-i})')
            e(f'v_bitop3_b32 v{P+i}, v{G+4*i+1}, v{G+4*i+3}, v15 bitop3:0x7e')
            e(f'ds_write2_b32 v{8+(i>>1)}, v{G+4*i}, v{G+4*i+2} offset0:{128*(i&1)} offset1:{128*(i&1)+1}')
        e(f'''v_or3_b32 v{P}, v{P}, v{P+1}, v{P+2}
              v_or3_b32 v{P+3}, v{P+3}, v{P+4}, v{P+5}
              v_or3_b32 v{P}, v{P}, v{P+6}, v{P+7}
              v_or_b32 v{P}, v{P}, v{P+3}
              v_cmp_ne_u32 vcc, 0, v{P}
              s_waitcnt lgkmcnt(0)''')
        self.spin_back(top)
        self.stamp(3)
        e('s_barrier')
        self.stamp(4)
        trreads(1)
        e('''s_barrier
             s_waitcnt lgkmcnt(0)
             s_barrier''')
        for s in range(4): e(f'ds_read_b128 {vr(P+4*s)}, v13 offset:{1024*s}')
        self.stamp(6)
        def cvt(Tp):
            for r in range(4):
                e(f'v_cvt_pk_bf16_f32 v{G+4*r+Tp}, v{DD+8*Tp+r}, v{DD+8*Tp+4+r}')
        for Tp in range(4):
            for s in range(4):
                if Tp == 0: e(f's_waitcnt lgkmcnt({3-s})')
                for T in (2*Tp, 2*Tp+1):
                    e(f'v_mfma_f32_16x16x32_bf16 {vr(DD+4*T)}, {vr(P+4*s)}, {vr(V+16*T+4*s)}, {vr(DD+4*T) if s else 0}')
            if Tp: cvt(Tp-1)
        e('s_nop 3')
        for r in range(4):
            e(f'''v_cvt_pk_bf16_f32 v{G+4*r+3}, v{DD+24+r}, v{DD+28+r}
                  buffer_store_dwordx4 {vr(G+4*r)}, v4, {srd(sWS)}, s{sT0+r} offen sc1''')
        self.stamp(7)
        e(f'''L_X_D:
              s_barrier
              s_cmp_ge_u32 s{sW}, 6
              s_cbranch_scc1 L_end
              s_mov_b32 s{sU}, s{sY}''')
        self.stamp(8)
        self.s4_issue()

    def dump(self):
        e = self.e
        e(f'''L_dump:
              s_memrealtime s[{sST+30}:{sST+31}]
              s_waitcnt lgkmcnt(0)
              s_lshl_b32 s{sT0}, s2, 3
              s_add_u32 s{sT0}, s{sT0}, s{sW}
              s_lshl_b32 s{sT0}, s{sT0}, 6
              s_add_u32 s{sT0}, s{sT0}, {DBG}
              v_mov_b32 v4, 0
              s_mov_b64 exec, 1''')
        for i in range(16):
            e(f'''v_mov_b32 v5, s{sST+2*i}
                  buffer_store_dword v5, v4, {srd(sWS)}, s{sT0} offen offset:{4*i}''')
        e('s_endpgm')

    def build(self):
        e = self.e
        if self.c.stamps:
            for i in range(1, 16): e(f's_mov_b32 s{sST+2*i}, 0')
        self.prologue()
        self.s1a()
        self.y_rest()
        self.s1b()
        self.s3a()
        self.s3b()
        self.fin()
        self.x_path()
        self.s4()
        if self.c.stamps: self.dump()
        e('''L_exit:
             s_endpgm
             L_codeend:''')
        body = self.L
        nh = hazard.check(body)
        hdr = open('cdna_kernels/' + KN[:-7] + '.s.ref').read().split('; Override')[0]
        out = hdr + f'''; Single persistent launch, one workgroup per CU; generated by a script of my own (stage map in the labels).
; @launch grid=(256,1,1) block=(512,1,1) lds={LDS_SIZE}
.amdgcn_target "amdgcn-amd-amdhsa--gfx950"
.text
.globl {KN}
.p2align 8
.type {KN},@function
{KN}:
''' + '\n'.join(body) + f'''
.section .rodata,"a"
.p2align 6
.amdhsa_kernel {KN}
  .amdhsa_next_free_vgpr 256
  .amdhsa_next_free_sgpr {96 if self.c.stamps else 64}
  .amdhsa_accum_offset 256
  .amdhsa_group_segment_fixed_size 0
  .amdhsa_kernarg_size 96
  .amdhsa_user_sgpr_count 2
  .amdhsa_user_sgpr_kernarg_segment_ptr 1
  .amdhsa_system_sgpr_workgroup_id_x 1
.end_amdhsa_kernel
'''
        return out, nh

if __name__ == '__main__':
    cfg = Cfg()
    out = sys.argv[1]
    for a in sys.argv[2:]:
        k, v = a.split('=')
        setattr(cfg, k, type(getattr(Cfg, k))(int(v, 0)))
    s, nh = Gen(cfg).build()
    open(out, 'w').write(s)
    print('written', out, 'hazards', nh)
```

```python
import sys, struct, math
import hazard

KN = 'sequential_preLN__compressed_kv_cla__dense_activation_silu__decode_kernel'

class Cfg:
    stamps = False
    nt = True
    x_n = 16
    s1b_n = 4
    stagger = True
    prefetch_code = True
    spin = 0x10000
    hold = 0
    hk = 0
    hi = 15
    hy0 = 0
    hy1 = 32
    hw0 = 0
    hw1 = 8
    hx = -1

H1 = 0x1000; H2 = 0x21000; ST = 0x31000; H4 = 0x39000; H56 = 0x49000; H7 = 0x4C000
PAY = 0x100000; DBG = 0x300000; WS_SIZE = 0x340000
OOB = 0x7ff00000
L_CKV = 0; L_QA = 133120; L_PB = 149760
L_WO = 0; L_W1 = 0; L_W2 = 38016; L_WUK = 77824; L_WUV = 110592
L_MX = 153856; L_CB = 153984; L_EX = 155264; L_CS = 156288
LDS_SIZE = 157696

sX, sCKV, sWQ, sWUK, sWUV, sWO, sW1, sW2, sOUT, sWS = 4, 8, 12, 16, 20, 24, 28, 32, 36, 40
sTAG, sW, sXC, sY, sH, sJ = 44, 45, 46, 47, 48, 49
sT0, sT1, sT2, sT3, sT4, sT5 = 50, 51, 52, 53, 54, 55
sU, sCNT, sSPIN = 56, 57, 58
sST = 60

def f2u(x): return struct.unpack('<I', struct.pack('<f', x))[0]
def srd(b): return f's[{b}:{b+3}]'
def vr(b, n=4): return f'v[{b}:{b+n-1}]' if n > 1 else f'v{b}'

class Gen:
    def __init__(self, cfg):
        self.c = cfg; self.L = []; self.nlab = 0; self.stampnames = {}
    def e(self, s):
        for ln in s.strip('\n').split('\n'):
            ln = ln.strip()
            if ln: self.L.append(('' if ln.endswith(':') else '    ') + ln)
    def lab(self, p='L'):
        self.nlab += 1; return f'{p}_{self.nlab}'
    def stamp(self, i, name=None):
        if self.c.stamps:
            self.e(f's_memrealtime s[{sST+2*i}:{sST+2*i+1}]')
    def end(self):
        if self.c.stamps: self.e('s_branch L_dump')
        else: self.e('s_endpgm')
    @property
    def NT(self): return ' nt' if self.c.nt else ''
    def spin_init(self): self.e(f's_mov_b32 s{sSPIN}, {self.c.spin}')
    def spin_back(self, top):
        done = self.lab('L_ok')
        self.e(f'''s_cbranch_vccz {done}
                   s_sub_u32 s{sSPIN}, s{sSPIN}, 1
                   s_cbranch_scc0 {top}
                   {done}:''')
    def dma_loop(self, n, vaddr, srdb, sOff, dOff, dM0):
        top = self.lab('L_dma')
        self.e(f'''s_mov_b32 s{sCNT}, {n-1}
                   {top}:
                   buffer_load_dwordx4 v{vaddr}, {srd(srdb)}, s{sOff} offen{self.NT} lds
                   s_add_u32 m0, m0, {dM0}
                   s_add_u32 s{sOff}, s{sOff}, {dOff}
                   s_sub_u32 s{sCNT}, s{sCNT}, 1
                   s_cbranch_scc0 {top}''')
    def swap_reduce(self, v0, v1, v2, v3):
        self.e(f'''s_nop 1
                   v_permlane32_swap_b32 v{v0}, v{v2}
                   v_permlane32_swap_b32 v{v1}, v{v3}
                   v_add_f32 v{v0}, v{v0}, v{v2}
                   v_add_f32 v{v1}, v{v1}, v{v3}
                   s_nop 1
                   v_permlane16_swap_b32 v{v0}, v{v1}
                   v_add_f32 v{v0}, v{v0}, v{v1}''')
    def allreduce(self, op, v, t):
        for k in (1, 2, 4, 8):
            self.e(f'''s_nop 1
                       {op}_dpp v{v}, v{v}, v{v} row_ror:{k} row_mask:0xf bank_mask:0xf''')
        for sw in ('16', '32'):
            self.e(f'''v_mov_b32 v{t}, v{v}
                       s_nop 1
                       v_permlane{sw}_swap_b32 v{v}, v{t}
                       {op} v{v}, v{v}, v{t}''')

    def prologue(self):
        e = self.e
        e(f'''s_cmp_ge_u32 s2, 256
              s_cbranch_scc1 L_exit''')
        self.stamp(0)
        for b, off in ((sX, 0), (sWQ, 16), (sCKV, 8), (sWUK, 24), (sWS, 88), (sWUV, 32), (sWO, 40)):
            e(f's_load_dwordx2 s[{b}:{b+1}], s[0:1], {off}')
        e('''v_lshrrev_b32 v1, 6, v0
             v_and_b32 v0, 63, v0''')
        e(f'v_readfirstlane_b32 s{sW}, v1')
        e('''v_and_b32 v1, 15, v0
             v_lshrrev_b32 v2, 4, v0''')
        for b, sz in ((sX, 1152), (sCKV, 8192*1024), (sWQ, 576*8192), (sWUK, 512*8192), (sWUV, 512*8192),
                      (sWO, 4096*1152), (sW1, 576*9216), (sW2, 4608*1152), (sOUT, 1152), (sWS, WS_SIZE)):
            e(f'''s_mov_b32 s{b+2}, {sz}
                  s_mov_b32 s{b+3}, 0x20000''')
        e(f'''s_and_b32 s{sXC}, s2, 7
              s_lshr_b32 s{sY}, s2, 3
              s_lshr_b32 s{sH}, s{sY}, 2
              s_lshl_b32 s{sT0}, s{sXC}, 2
              s_add_u32 s{sH}, s{sH}, s{sT0}
              s_and_b32 s{sJ}, s{sY}, 3
              s_waitcnt lgkmcnt(0)''')
        for b, off in ((sW1, 56), (sW2, 64), (sOUT, 72)):
            e(f's_load_dwordx2 s[{b}:{b+1}], s[0:1], {off}')
        e(f'''s_load_dword s{sTAG}, s[{sWS}:{sWS+1}], 0
              s_cmp_ge_u32 s{sY}, 16
              s_cbranch_scc1 L_X
              s_cmp_lg_u32 s{sW}, 0
              s_cbranch_scc1 L_Y_not0''')
    def get_tag(self):
        self.e(f'''s_waitcnt lgkmcnt(0)
                   s_or_b32 s{sTAG}, s{sTAG}, 0x40004000
                   s_add_u32 s{sTAG}, s{sTAG}, 1
                   s_and_b32 s{sTAG}, s{sTAG}, 0xbfffbfff''')

    def s1a(self):
        e = self.e
        XS, X1, XR, SEL, A0, D, WQ = 8, 12, 16, 40, 48, 56, 112
        e(f'''v_lshlrev_b32 v5, 4, v0
              v_lshlrev_b32 v6, 2, v0
              s_mul_i32 s{sT0}, s{sJ}, 288
              v_mul_u32_u24 v4, 72, v2
              buffer_load_dwordx4 {vr(XS)}, v5, {srd(sX)}, 0 offen
              buffer_load_dword v{X1}, v6, {srd(sX)}, 0 offen offset:1024''')
        for k in range(4):
            e(f'buffer_load_dwordx4 {vr(XR+4*k)}, v4, {srd(sX)}, s{sT0} offen offset:{16*k}')
        e(f'buffer_load_dwordx2 {vr(XR+16,2)}, v4, {srd(sX)}, s{sT0} offen offset:64')
        e(f'''v_mul_u32_u24 v7, {36*8192}, v2
              v_lshl_add_u32 v7, v1, 4, v7
              s_mul_i32 s{sT1}, s{sJ}, {144*8192}
              s_lshl_b32 s{sT2}, s{sH}, 8
              s_add_u32 s{sT1}, s{sT1}, s{sT2}''')
        for t in range(36):
            e(f'buffer_load_dwordx4 {vr(WQ+4*t)}, v7, {srd(sWQ)}, s{sT1} offen{self.NT}')
            if t < 35: e(f's_add_u32 s{sT1}, s{sT1}, 8192')
        e('s_barrier')
        self.stamp(1)
        e(f'''v_and_b32 v34, 2, v1
              v_cmp_ne_u32 vcc, 0, v34
              v_mov_b32 v35, 0x0504
              v_mov_b32 v36, 0x0706
              v_mov_b32 v37, 0x0100
              v_cndmask_b32 v35, v35, v37, vcc
              v_cndmask_b32 v36, v36, v37, vcc
              v_and_b32 v34, 1, v1
              v_lshlrev_b32 v34, 4, v34
              v_xor_b32 v35, 0x0c0c, v35
              v_xor_b32 v36, 0x0c0c, v36
              v_lshlrev_b32 v35, v34, v35
              v_lshlrev_b32 v36, v34, v36
              v_xor_b32 v35, 0x0c0c0c0c, v35
              v_xor_b32 v36, 0x0c0c0c0c, v36
              v_mov_b32 v37, 0x0c0c0c0c
              v_lshrrev_b32 v34, 2, v1''')
        for rho in range(4):
            e(f'''v_cmp_eq_u32 vcc, {rho}, v34
                  s_nop 1
                  v_cndmask_b32 v{SEL+rho}, v37, v35, vcc
                  v_cndmask_b32 v{SEL+4+rho}, v37, v36, vcc''')
        e(f'''v_mov_b32 v38, 0x3f803f80
              v_mov_b32 v34, 0
              v_mov_b32 v35, 0''')
        e(f'''s_lshl_b32 s{sT2}, s{sH}, 12
              s_lshl_b32 s{sT3}, s{sJ}, 10
              s_add_u32 s{sT2}, s{sT2}, s{sT3}
              s_add_u32 s{sT2}, s{sT2}, {H1}''')
        e('s_waitcnt vmcnt(41)')
        for k in range(5):
            e(f'''v_dot2_f32_bf16 v34, v{XS+k}, v38, v34
                  v_dot2_f32_bf16 v35, v{XS+k}, v{XS+k}, v35''')
        e('s_nop 2')
        for k in (1, 2, 4, 8):
            e(f'''v_add_f32_dpp v34, v34, v34 row_ror:{k} row_mask:0xf bank_mask:0xf
                  v_add_f32_dpp v35, v35, v35 row_ror:{k} row_mask:0xf bank_mask:0xf
                  s_nop 0''')
        for sw in ('16', '32'):
            e(f'''v_mov_b32 v36, v34
                  v_mov_b32 v37, v35
                  s_nop 0
                  v_permlane{sw}_swap_b32 v34, v36
                  v_permlane{sw}_swap_b32 v35, v37
                  v_add_f32 v34, v34, v36
                  v_add_f32 v35, v35, v37''')
        cs = math.log2(math.e) / math.sqrt(128.0)
        e(f'''v_mul_f32 v34, {hex(f2u(1/576))}, v34
              v_mul_f32 v35, {hex(f2u(1/576))}, v35
              v_fma_f32 v35, -v34, v34, v35
              v_add_f32 v35, {hex(f2u(1e-5))}, v35
              v_rsq_f32 v35, v35
              s_waitcnt vmcnt(36)
              v_mul_f32 v35, {hex(f2u(cs))}, v35''')
        def perm(t):
            for rho in range(4):
                e(f'v_perm_b32 v{A0+4*(t&1)+rho}, v{XR+(t>>1)}, v38, v{SEL+4*(t&1)+rho}')
        perm(0)
        for t in range(36):
            if t < 35: perm(t+1)
            else: self.get_tag()
            e(f's_waitcnt vmcnt({35-t})')
            e(f'v_mfma_f32_16x16x32_bf16 {vr(D)}, {vr(A0+4*(t&1))}, {vr(WQ+4*t)}, {vr(D) if t else 0}')
        self.stamp(2)
        e(f'''v_mov_b32 v62, s{sTAG}
              v_mov_b32 v63, s{sTAG}
              s_nop 5
              v_fma_f32 v60, -v34, v{D+2}, v{D}
              v_fma_f32 v61, -v34, v{D+3}, v{D+1}
              v_mul_f32 v60, v60, v35
              v_mul_f32 v61, v61, v35
              buffer_store_dwordx4 v[60:63], v5, {srd(sWS)}, s{sT2} offen sc1''')
        self.stamp(3)
        e('s_branch L_Y_lo')

    def y_rest(self):
        e = self.e
        e(f'''L_Y_not0:
              s_cmp_ge_u32 s{sW}, 4
              s_cbranch_scc1 L_S1b''')
        if self.c.prefetch_code:
            sk = self.lab('L_nopf')
            e(f'''s_cmp_lg_u32 s{sW}, 1
                  s_cbranch_scc1 {sk}
                  s_getpc_b64 s[{sT0}:{sT1}]
                  L_pc:
                  s_sub_u32 s{sT0}, s{sT0}, L_pc-{KN}
                  s_subb_u32 s{sT1}, s{sT1}, 0
                  v_lshlrev_b32 v4, 7, v0
                  v_min_u32 v5, L_codeend-{KN}-4, v4
                  global_load_dword v250, v5, s[{sT0}:{sT1}]
                  v_add_u32 v4, 8192, v4
                  v_min_u32 v5, L_codeend-{KN}-4, v4
                  global_load_dword v251, v5, s[{sT0}:{sT1}]
                  {sk}:''')
        e('s_barrier')
        self.get_tag()
        e('s_branch L_Y_lo')

    def s1b(self):
        e = self.e
        W, G, V, D = 16, 48, 64, 80
        e('L_S1b:')
        sk = self.lab('L_noclr')
        e(f'''s_cmp_lg_u32 s{sW}, 4
              s_cbranch_scc1 {sk}
              s_lshl_b32 s{sT0}, s{sH}, 2
              s_add_u32 s{sT0}, s{sT0}, s{sJ}
              s_lshl_b32 s{sT0}, s{sT0}, 9
              s_add_u32 s{sT0}, s{sT0}, {H4}
              s_mul_i32 s{sT1}, s{sXC}, 1152
              s_lshl_b32 s{sT2}, s{sY}, 7
              s_add_u32 s{sT1}, s{sT1}, s{sT2}
              s_add_u32 s{sT1}, s{sT1}, {H56-512}
              s_cmp_lt_u32 s{sY}, 9
              s_cselect_b32 s{sT1}, s{sT1}, {OOB}
              v_mov_b32 v4, s{sT0}
              v_mov_b32 v5, s{sT1}
              v_mov_b32 v6, {OOB}
              v_cmp_gt_u32 vcc, 40, v0
              v_mov_b32 v8, -1
              v_mov_b32 v9, -1
              v_cndmask_b32 v5, v6, v5, vcc
              v_cmp_gt_u32 vcc, 32, v0
              v_mov_b32 v10, -1
              v_mov_b32 v11, -1
              v_cndmask_b32 v4, v5, v4, vcc
              v_lshl_add_u32 v4, v0, 4, v4
              buffer_store_dwordx4 v[8:11], v4, {srd(sWS)}, 0 offen sc1
              {sk}:''')
        e(f'''s_sub_u32 s{sT4}, s{sW}, 4
              v_lshrrev_b32 v4, 5, v0
              v_xor_b32 v4, v4, v1
              v_lshlrev_b32 v4, 4, v4
              v_lshl_add_u32 v4, v2, 13, v4
              s_lshl_b32 s{sT0}, s{sJ}, 2
              s_add_u32 s{sT0}, s{sT0}, s{sT4}
              s_lshl_b32 s{sT5}, s{sT0}, 7
              s_lshl_b32 s{sT0}, s{sT0}, 18
              s_lshl_b32 s{sT1}, s{sH}, 8
              s_add_u32 s{sT0}, s{sT0}, s{sT1}
              s_lshl_b32 s{sT1}, s{sT4}, 13
              s_add_u32 s{sT1}, s{sT1}, {L_WUK}
              s_mov_b32 m0, s{sT1}''')
        e(f'''v_and_b32 v5, 1, v2
              v_lshlrev_b32 v5, 1, v5
              v_xor_b32 v5, v5, v2
              v_lshlrev_b32 v5, 2, v5''')
        e('s_barrier')
        for i in range(8):
            if i: e(f'v_xor_b32 v6, {32*i}, v4')
            e(f'buffer_load_dwordx4 v{6 if i else 4}, {srd(sWUK)}, s{sT0} offen{self.NT} lds')
            if i < 7:
                e(f'''s_add_u32 m0, m0, 1024
                      s_add_u32 s{sT0}, s{sT0}, 32768''')
        self.stamp(1)
        e(f'''v_xor_b32 v6, v5, v1
              v_lshlrev_b32 v6, 4, v6
              v_lshl_add_u32 v6, v1, 9, v6
              v_add_u32 v8, s{sT1}, v6''')
        for s in range(1, 4): e(f'v_xor_b32 v{8+s}, {16*s}, v8')
        e(f'''v_lshrrev_b32 v6, 2, v1
              v_lshlrev_b32 v6, 4, v6
              v_and_b32 v7, 3, v1
              v_add3_u32 v6, v6, v5, v7
              v_lshlrev_b32 v12, 4, v6
              s_lshl_b32 s{sT2}, s{sH}, 12
              s_add_u32 s{sT2}, s{sT2}, {H1}''')
        e(f'''v_lshlrev_b32 v13, 3, v0
              v_mov_b32 v6, {OOB}
              v_cmp_gt_u32 vcc, 16, v0
              s_lshl_b32 s{sT3}, s{sH}, 11
              s_add_u32 s{sT3}, s{sT3}, s{sT5}
              s_add_u32 s{sT3}, s{sT3}, {H2}
              v_cndmask_b32 v13, v6, v13, vcc''')
        self.get_tag()
        e(f'v_mov_b32 v15, s{sTAG}')
        self.spin_init()
        def loads():
            for p in range(4):
                e(f'buffer_load_dwordx4 {vr(G+4*p)}, v12, {srd(sWS)}, s{sT2} offen offset:{1024*p} sc1')
        e(f's_waitcnt vmcnt({self.c.s1b_n})')
        loads()
        e('s_waitcnt vmcnt(4)')
        self.stamp(2)
        for t in range(2):
            for s in range(4):
                e(f'ds_read_b128 {vr(W+16*t+4*s)}, v{8+s} offset:{256*t}')
        chk = self.lab('L_chk'); top = self.lab('L_poll')
        e(f's_branch {chk}\n{top}:')
        loads()
        e(f'''{chk}:
              s_waitcnt vmcnt(0)
              v_bitop3_b32 v6, v{G+2}, v{G+6}, v15 bitop3:0x7e
              v_bitop3_b32 v7, v{G+10}, v{G+14}, v15 bitop3:0x7e
              v_or_b32 v6, v6, v7
              v_cmp_ne_u32 vcc, 0, v6''')
        self.spin_back(top)
        self.stamp(3)
        e(f'''v_pk_add_f32 {vr(G,2)}, {vr(G,2)}, {vr(G+4,2)}
              v_pk_add_f32 {vr(G+8,2)}, {vr(G+8,2)}, {vr(G+12,2)}
              v_pk_add_f32 {vr(G,2)}, {vr(G,2)}, {vr(G+8,2)}
              v_cvt_pk_bf16_f32 v6, v{G}, v{G+1}
              s_waitcnt lgkmcnt(0)
              s_nop 0''')
        def bc(s):
            for u in range(4):
                e(f'v_mov_b32_dpp v{V+4*s+u}, v6 row_newbcast:{4*u+s} row_mask:0xf bank_mask:0xf')
        bc(0)
        for s in range(4):
            if s < 3: bc(s+1)
            for t in range(2):
                e(f'v_mfma_f32_16x16x32_bf16 {vr(D+4*t)}, {vr(V+4*s)}, {vr(W+16*t+4*s)}, {vr(D+4*t) if s else 0}')
        e(f'''s_nop 7
              v_cvt_pk_bf16_f32 v14, v{D}, v{D+4}
              buffer_store_dwordx2 v[14:15], v13, {srd(sWS)}, s{sT3} offen sc1''')
        self.stamp(4)
        e('s_barrier')
        e(f'''s_cmp_lt_u32 s{sY}, 9
              s_cbranch_scc1 L_S3b
              s_cmp_lt_u32 s{sY}, 11
              s_cbranch_scc1 L_Yhi_S4
              s_cmp_ge_u32 s{sY}, 14
              s_cbranch_scc1 L_end
              s_cmp_eq_u32 s{sW}, 4
              s_cbranch_scc1 L_FIN
              L_end:''')
        self.end()
        e(f'''L_Yhi_S4:
              s_cmp_ge_u32 s{sW}, 6
              s_cbranch_scc1 L_end
              s_add_u32 s{sU}, s{sY}, 7''')
        self.s4_issue()
        e('''s_barrier
             s_branch L_S4''')

    def s3a(self):
        e = self.e
        B, PL, A, D, F, MK = 16, 48, 64, 80, 88, 104
        e('L_Y_lo:')
        e(f'''v_lshrrev_b32 v4, 2, v0
              v_and_b32 v5, 3, v0
              v_lshlrev_b32 v4, 13, v4
              v_lshl_add_u32 v4, v5, 4, v4
              s_lshl_b32 s{sT0}, s{sJ}, 20
              s_lshl_b32 s{sT1}, s{sH}, 8
              s_add_u32 s{sT0}, s{sT0}, s{sT1}
              s_lshl_b32 s{sT1}, s{sW}, 6
              s_add_u32 s{sT0}, s{sT0}, s{sT1}
              s_mul_i32 s{sT1}, s{sW}, 10240
              s_add_u32 s{sT1}, s{sT1}, {L_WUV}''')
        e('s_barrier')
        self.stamp(4)
        for j in range(8):
            e(f'''s_add_u32 m0, s{sT1}, {j*1280 + (0, 32, 128, 160)[j & 3]}
                  s_nop 0
                  buffer_load_dwordx4 v4, {srd(sWUV)}, s{sT0} offen{self.NT} lds''')
            if j < 7: e(f's_add_u32 s{sT0}, s{sT0}, {16*8192}')
        e(f'''v_lshrrev_b32 v6, 2, v1
              v_mul_u32_u24 v7, 1280, v6
              v_and_b32 v8, 1, v6
              v_lshl_add_u32 v7, v8, 5, v7
              v_lshrrev_b32 v8, 1, v6
              v_lshl_add_u32 v7, v8, 7, v7
              v_lshl_add_u32 v7, v2, 6, v7
              v_lshl_add_u32 v7, v5, 3, v7
              v_add_u32 v7, s{sT1}, v7''')
        sk = self.lab('L_nos4')
        e(f'''s_sub_u32 s{sT2}, s{sY}, 9
              s_cmp_ge_u32 s{sT2}, 2
              s_cbranch_scc1 {sk}
              s_add_u32 s{sU}, s{sY}, 7''')
        self.s4_issue()
        e(f'{sk}:')
        e(f'''v_and_b32 v8, 1, v1
              v_lshlrev_b32 v8, 4, v8
              v_mov_b32 v9, 0xffff
              v_lshlrev_b32 v9, v8, v9
              v_bfe_u32 v8, v1, 1, 2''')
        for rho in range(4):
            e(f'''v_cmp_eq_u32 vcc, {rho}, v8
                  s_nop 1
                  v_cndmask_b32 v{MK+rho}, 0, v9, vcc''')
        e(f'''v_lshlrev_b32 v8, 9, v0
              s_lshl_b32 s{sT2}, s{sH}, 4
              s_add_u32 s{sT2}, s{sT2}, {ST}
              v_lshlrev_b32 v9, 4, v0
              s_lshl_b32 s{sT3}, s{sH}, 2
              s_add_u32 s{sT3}, s{sT3}, s{sJ}
              s_lshl_b32 s{sT3}, s{sT3}, 2
              s_add_u32 s{sT3}, s{sT3}, s{sW}
              s_lshl_b32 s{sT4}, s{sT3}, 7
              s_add_u32 s{sT4}, s{sT4}, {H4}
              s_lshl_b32 s{sT3}, s{sT3}, 12
              s_add_u32 s{sT3}, s{sT3}, {PAY}
              s_lshl_b32 s{sT5}, s{sW}, 6
              v_lshl_add_u32 v10, v2, 2, s{sT5}
              s_mul_i32 s{sT5}, s{sW}, 320
              s_add_u32 s{sT5}, s{sT5}, {L_CB}
              v_and_b32 v11, 1, v2
              v_lshlrev_b32 v11, 3, v11
              v_lshl_add_u32 v11, v1, 4, v11
              v_add_u32 v11, s{sT5}, v11
              v_mul_u32_u24 v12, 320, v5
              v_lshl_add_u32 v12, v2, 4, v12
              v_add_u32 v12, {L_CB}, v12
              v_lshlrev_b32 v13, 2, v0
              v_mov_b32 v14, {OOB}
              v_cmp_gt_u32 vcc, 16, v0
              s_waitcnt vmcnt(0)
              v_mov_b32 v15, -1
              v_cndmask_b32 v13, v14, v13, vcc''')
        self.stamp(5)
        for t in range(2):
            for s in range(4):
                for a in range(2):
                    e(f'ds_read_b64_tr_b16 {vr(B+16*t+4*s+2*a,2)}, v7 offset:{a*5120+s*256+t*32}')
        self.spin_init()
        top = self.lab('L_poll')
        e(f'''{top}:
              buffer_load_dwordx4 {vr(F)}, v8, {srd(sWS)}, s{sT2} offen sc1
              s_waitcnt vmcnt(0)
              v_cmp_ne_u32 vcc, s{sTAG}, v{F+2}''')
        self.spin_back(top)
        def loads():
            for t in range(4):
                e(f'buffer_load_dwordx4 {vr(PL+4*t)}, v9, {srd(sWS)}, s{sT3} offen offset:{1024*t} sc1')
        loads()
        self.stamp(6)
        e(f'v_mov_b32 v{F+4}, v{F}')
        self.allreduce('v_max_f32', F+4, F+5)
        e(f'''v_sub_f32 v{F+4}, v{F}, v{F+4}
              v_exp_f32 v{F+4}, v{F+4}
              s_nop 0
              v_cvt_pk_bf16_f32 v{F+4}, v{F+4}, v{F+4}
              s_waitcnt lgkmcnt(0)''')
        for t in range(4):
            e(f'ds_bpermute_b32 v{F+8+t}, v10, v{F+4} offset:{16*t}')
        e(f'''v_and_b32 v{F+6}, 0xffff0000, v{F+4}
              v_mul_f32 v{F+6}, v{F+6}, v{F+1}''')
        self.allreduce('v_add_f32', F+6, F+5)
        e(f'''v_rcp_f32 v{F+6}, v{F+6}
              s_waitcnt lgkmcnt(0)''')
        for t in range(4):
            for rho in range(4):
                e(f'v_and_b32 v{A+4*t+rho}, v{F+8+t}, v{MK+rho}')
        chk = self.lab('L_chk'); top = self.lab('L_poll')
        self.spin_init()
        e(f's_branch {chk}\n{top}:')
        loads()
        e(f'{chk}:')
        for t in range(4):
            p = PL + 4*t
            e(f's_waitcnt vmcnt({3-t})')
            e(f'v_mfma_f32_16x16x32_bf16 {vr(D)}, {vr(A+4*t)}, {vr(p)}, {vr(D) if t else 0}')
            if t == 0:
                e(f'''v_max3_u32 v6, v{p}, v{p+1}, v{p+2}
                      v_max_u32 v6, v6, v{p+3}''')
            else:
                e(f'''v_max3_u32 v6, v6, v{p}, v{p+1}
                      v_max3_u32 v6, v6, v{p+2}, v{p+3}''')
        e(f'v_cmp_eq_u32 vcc, v15, v6')
        self.spin_back(top)
        self.stamp(7)
        e(f'''s_nop 3
              v_mul_f32 v{D+4}, v{D}, v{F+6}
              v_mul_f32 v{D+5}, v{D+1}, v{F+6}
              v_mul_f32 v{D+6}, v{D+2}, v{F+6}
              v_mul_f32 v{D+7}, v{D+3}, v{F+6}
              v_cvt_pk_bf16_f32 v{D+4}, v{D+4}, v{D+5}
              v_cvt_pk_bf16_f32 v{D+5}, v{D+6}, v{D+7}
              ds_write_b64 v11, {vr(D+4,2)}
              s_waitcnt lgkmcnt(0)
              s_barrier''')
        for s in range(4):
            e(f'ds_read_b128 {vr(A+4*s)}, v12 offset:{64*s}')
        for s in range(4):
            e(f's_waitcnt lgkmcnt({3-s})')
            for t in range(2):
                e(f'v_mfma_f32_16x16x32_bf16 {vr(D+4*t)}, {vr(A+4*s)}, {vr(B+16*t+4*s)}, {vr(D+4*t) if s else 0}')
        e(f'''s_nop 6
              v_add_f32 v{D}, v{D}, v{D+1}
              v_add_f32 v{D+2}, v{D+2}, v{D+3}
              v_add_f32 v{D+4}, v{D+4}, v{D+5}
              v_add_f32 v{D+6}, v{D+6}, v{D+7}
              v_add_f32 v{D}, v{D}, v{D+2}
              v_add_f32 v{D+4}, v{D+4}, v{D+6}
              v_cvt_pk_bf16_f32 v6, v{D}, v{D+4}
              buffer_store_dword v6, v13, {srd(sWS)}, s{sT4} offen sc1''')
        self.stamp(8)
        e(f'''s_sub_u32 s{sT2}, s{sY}, 9
              s_cmp_lt_u32 s{sT2}, 2
              s_cbranch_scc1 L_S4''')
        self.end()

    def s3b(self):
        e = self.e
        B, D, G = 16, 80, 144
        e('L_S3b:')
        e(f'''v_lshrrev_b32 v4, 3, v0
              v_mul_u32_u24 v4, 1152, v4
              v_and_b32 v5, 7, v0
              v_lshl_add_u32 v4, v5, 4, v4
              s_lshl_b32 s{sT0}, s{sXC}, 2
              s_add_u32 s{sT2}, s{sT0}, s{sT4}
              s_mul_i32 s{sT0}, s{sT2}, {128*1152}
              s_lshl_b32 s{sT1}, s{sY}, 7
              s_add_u32 s{sT0}, s{sT0}, s{sT1}
              s_mul_i32 s{sT1}, s{sT4}, 16640
              s_add_u32 m0, s{sT1}, {L_WO}''')
        self.dma_loop(16, 4, sWO, sT0, 8*1152, 1040)
        e(f'''v_bfe_u32 v5, v1, 2, 1
              v_lshl_add_u32 v5, v2, 1, v5
              v_mul_u32_u24 v5, 2080, v5
              v_lshrrev_b32 v6, 3, v1
              v_lshl_add_u32 v5, v6, 7, v5
              v_and_b32 v6, 3, v1
              v_lshl_add_u32 v5, v6, 3, v5
              v_add_u32 v5, s{sT1}, v5''')
        e(f'''v_lshrrev_b32 v7, 2, v1
              v_lshl_add_u32 v7, v7, 2, v2
              v_lshlrev_b32 v7, 7, v7
              v_lshl_add_u32 v7, v6, 4, v7
              s_lshl_b32 s{sT2}, s{sT2}, 11
              s_add_u32 s{sT2}, s{sT2}, {H4}''')
        e(f'''v_lshlrev_b32 v8, 2, v0
              s_lshl_b32 s{sT3}, s{sY}, 7
              s_cmp_eq_u32 s{sXC}, 0
              s_cselect_b32 s{sT5}, s{sT3}, 4096
              v_add_u32 v9, s{sT5}, v8
              buffer_load_dword v12, v9, {srd(sX)}, 0 offen
              s_lshl_b32 s{sT5}, s{sT4}, 8
              s_add_u32 s{sT5}, s{sT5}, {L_EX}
              v_add_u32 v9, s{sT5}, v8
              v_lshlrev_b32 v10, 3, v0
              v_and_b32 v10, 0xff, v10
              v_add_u32 v10, {L_EX}, v10
              v_mov_b32 v11, {OOB}
              v_cmp_gt_u32 vcc, 32, v0
              s_mul_i32 s{sT5}, s{sXC}, 1152
              s_add_u32 s{sT3}, s{sT3}, s{sT5}
              s_add_u32 s{sT3}, s{sT3}, {H56}
              v_cndmask_b32 v8, v11, v8, vcc
              v_mov_b32 v15, -1
              s_waitcnt vmcnt(0)
              v_and_b32 v13, 0xffff0000, v12
              v_lshlrev_b32 v12, 16, v12''')
        self.stamp(5)
        for T in range(4):
            for s in range(4):
                for a in range(2):
                    e(f'ds_read_b64_tr_b16 {vr(B+16*T+4*s+2*a,2)}, v5 offset:{(s>>1)*1040+(4*(s&1)+2*a)*128+T*32}')
        e('''s_waitcnt lgkmcnt(0)
             s_barrier''')
        self.stamp(6)
        self.spin_init()
        top = self.lab('L_poll')
        e(f'''{top}:
              buffer_load_dwordx4 {vr(G)}, v7, {srd(sWS)}, s{sT2} offen sc1
              s_waitcnt vmcnt(0)
              v_max3_u32 v6, v{G}, v{G+1}, v{G+2}
              v_max_u32 v6, v6, v{G+3}
              v_cmp_eq_u32 vcc, v15, v6''')
        self.spin_back(top)
        self.stamp(7)
        def red(T):
            d = D + 16*T
            e(f'''v_add_f32 v{d}, v{d}, v{d+5}
                  v_add_f32 v{d+10}, v{d+10}, v{d+15}
                  v_add_f32 v{d}, v{d}, v{d+10}''')
        for T in range(4):
            for s in range(4):
                e(f'v_mfma_f32_16x16x32_bf16 {vr(D+16*T+4*s)}, {vr(G)}, {vr(B+16*T+4*s)}, 0')
            if T >= 2: red(T-2)
        e('s_nop 0')
        red(2)
        e('s_nop 0')
        red(3)
        self.swap_reduce(D, D+16, D+32, D+48)
        e(f'''ds_write_b32 v9, v{D}
              s_waitcnt lgkmcnt(0)
              s_barrier
              s_cmp_lg_u32 s{sW}, 4
              s_cbranch_scc1 L_end
              ds_read2_b64 {vr(D)}, v10 offset0:0 offset1:32
              ds_read2_b64 {vr(D+4)}, v10 offset0:64 offset1:96
              s_waitcnt lgkmcnt(1)
              v_pk_add_f32 v[12:13], v[12:13], {vr(D,2)}
              v_pk_add_f32 v[12:13], v[12:13], {vr(D+2,2)}
              s_waitcnt lgkmcnt(0)
              v_pk_add_f32 {vr(D+4,2)}, {vr(D+4,2)}, {vr(D+6,2)}
              v_pk_add_f32 v[12:13], v[12:13], {vr(D+4,2)}
              v_cvt_pk_bf16_f32 v6, v12, v13
              buffer_store_dword v6, v8, {srd(sWS)}, s{sT3} offen sc1''')
        self.stamp(8)
        self.end()

    def s4_issue(self):
        e = self.e
        sk = self.lab('L_now1')
        e(f'''s_mul_i32 s{sT2}, s{sXC}, 18
              s_add_u32 s{sU}, s{sU}, s{sT2}
              s_cmp_ge_u32 s{sW}, 3
              s_cbranch_scc1 {sk}
              v_lshrrev_b32 v120, 2, v0
              v_mul_u32_u24 v120, 9216, v120
              v_and_b32 v121, 3, v0
              v_lshl_add_u32 v120, v121, 4, v120
              s_mul_i32 s{sT2}, s{sW}, {192*9216}
              s_lshl_b32 s{sT3}, s{sU}, 6
              s_add_u32 s{sT2}, s{sT2}, s{sT3}
              s_mul_i32 s{sT3}, s{sW}, {12*1056}
              s_add_u32 m0, s{sT3}, {L_W1}''')
        self.dma_loop(12, 120, sW1, sT2, 16*9216, 1056)
        e(f'{sk}:')
        for i in range(3):
            e(f'''v_add_u32 v120, {64*i}, v0
                  v_mul_u32_u24 v121, 5462, v120
                  v_lshrrev_b32 v121, 16, v121
                  v_mul_u32_u24 v121, {1152-192}, v121
                  v_lshl_add_u32 v{122+i}, v120, 4, v121''')
        e(f'''s_mul_i32 s{sT2}, s{sU}, {32*1152}
              s_mul_i32 s{sT3}, s{sW}, 192
              s_add_u32 s{sT2}, s{sT2}, s{sT3}
              s_mul_i32 s{sT3}, s{sW}, 6144
              s_add_u32 m0, s{sT3}, {L_W2}''')
        for i in range(6):
            if i == 3: e(f's_add_u32 s{sT2}, s{sT2}, {16*1152}')
            else: e('s_nop 0')
            e(f'buffer_load_dwordx4 v{122+i%3}, {srd(sW2)}, s{sT2} offen{self.NT} lds')
            if i < 5: e('s_add_u32 m0, m0, 1024')

    def clear_check(self, va, g):
        e = self.e
        top = self.lab('L_poll')
        self.spin_init()
        e(f'''v_lshlrev_b32 v{va}, 9, v0
              s_mov_b32 s{sT2}, {H2}
              s_mov_b32 s{sT3}, {H2+32768}
              v_mov_b32 v{g+4}, s{sTAG}
              {top}:
              buffer_load_dwordx2 {vr(g,2)}, v{va}, {srd(sWS)}, s{sT2} offen sc1
              buffer_load_dwordx2 {vr(g+2,2)}, v{va}, {srd(sWS)}, s{sT3} offen sc1
              s_waitcnt vmcnt(0)
              v_bitop3_b32 v{g}, v{g+1}, v{g+3}, v{g+4} bitop3:0x7e
              v_cmp_ne_u32 vcc, 0, v{g}''')
        self.spin_back(top)

    def s4(self):
        e = self.e
        B2, B1, ONE, Lr, GR, RS, D, A = 16, 40, 88, 92, 104, 108, 112, 128
        e('L_S4:')
        self.stamp(9)
        e(f'''v_lshrrev_b32 v4, 2, v1
              v_and_b32 v5, 3, v1
              v_lshl_add_u32 v6, v2, 3, v4
              v_mul_u32_u24 v6, 192, v6
              v_lshl_add_u32 v6, v5, 3, v6
              s_mul_i32 s{sT0}, s{sW}, 6144
              s_add_u32 s{sT0}, s{sT0}, {L_W2}
              v_add_u32 v6, s{sT0}, v6
              v_and_b32 v7, 7, v1
              v_lshl_add_u32 v7, v2, 3, v7
              v_lshlrev_b32 v7, 2, v7
              v_add_u32 v7, {L_EX}, v7
              v_mov_b32 v8, {L_EX}
              v_lshlrev_b32 v9, 4, v0
              v_mov_b32 v10, {OOB}
              v_cmp_gt_u32 vcc, 16, v0
              s_mul_i32 s{sT4}, s{sU}, 1536
              s_lshl_b32 s{sT0}, s{sW}, 8
              s_add_u32 s{sT4}, s{sT4}, s{sT0}
              s_add_u32 s{sT4}, s{sT4}, {H7}
              v_cndmask_b32 v9, v10, v9, vcc
              s_cmp_ge_u32 s{sW}, 3
              s_cbranch_scc1 L_S4_hi''')
        self.clear_check(10, Lr)
        self.stamp(10)
        e(f'''v_mul_u32_u24 v10, 1056, v2
              v_lshl_add_u32 v10, v4, 6, v10
              v_lshl_add_u32 v10, v5, 3, v10
              s_mul_i32 s{sT0}, s{sW}, {12*1056}
              s_add_u32 s{sT0}, s{sT0}, {L_W1}
              v_add_u32 v10, s{sT0}, v10''')
        for b in range(3):
            for s in range(2):
                for t in range(2):
                    for a in range(2):
                        e(f'ds_read_b64_tr_b16 {vr(B1+16*b+8*s+4*t+2*a,2)}, v10 offset:{4*b*1056+(8*s+4*a)*64+t*32}')
        def w2reads():
            for t in range(6):
                for a in range(2):
                    e(f'ds_read_b64_tr_b16 {vr(B2+4*t+2*a,2)}, v6 offset:{4*a*192+t*32}')
        w2reads()
        for k in range(4): e(f'v_mov_b32 v{ONE+k}, 0x3f803f80')
        e(f'''v_lshrrev_b32 v11, 1, v1
              v_mul_u32_u24 v11, 1152, v11
              v_and_b32 v12, 1, v1
              v_cmp_ne_u32 s[{sT2}:{sT3}], 0, v12
              v_lshl_add_u32 v12, v2, 1, v12
              v_lshl_add_u32 v11, v12, 4, v11
              s_mul_i32 s{sT1}, s{sW}, 384
              s_add_u32 s{sT1}, s{sT1}, {H56}
              s_lshl_b32 s{sT0}, s{sW}, 8
              s_add_u32 s{sT0}, s{sT0}, {L_EX}
              v_lshl_add_u32 v12, v0, 2, s{sT0}
              v_mov_b32 v15, -1
              s_waitcnt lgkmcnt(0)''')
        for b in range(3):
            for s in range(2):
                for t in range(2):
                    e(f'v_mfma_f32_16x16x32_bf16 {vr(D+4*t)}, {vr(ONE)}, {vr(B1+16*b+8*s+4*t)}, {vr(D+4*t) if (b or s) else 0}')
        e(f'''v_cmp_gt_u32 vcc, 16, v0
              s_nop 6
              v_cndmask_b32 v13, v{D+4}, v{D}, vcc
              ds_write_b32 v12, v13 offset:{L_CS-L_EX}
              s_waitcnt lgkmcnt(0)
              s_barrier''')
        def csread():
            e(f'''ds_read2st64_b32 v[{A}:{A+1}], v7 offset0:{(L_CS-L_EX)//256} offset1:{(L_CS-L_EX)//256+1}
                  ds_read_b32 v14, v7 offset:{L_CS-L_EX+512}
                  s_waitcnt lgkmcnt(0)
                  v_add_f32 v14, v14, v{A}
                  v_add_f32 v14, v14, v{A+1}''')
        csread()
        self.stamp(11)
        self.spin_init()
        top = self.lab('L_poll')
        e(f'{top}:')
        for b in range(3):
            e(f'buffer_load_dwordx4 {vr(Lr+4*b)}, v11, {srd(sWS)}, s{sT1} offen offset:{128*b} sc1')
        e(f'''s_waitcnt vmcnt(0)
              v_max3_u32 v13, v{Lr}, v{Lr+1}, v{Lr+2}''')
        for k in range(3, 11, 2):
            e(f'v_max3_u32 v13, v13, v{Lr+k}, v{Lr+k+1}')
        e(f'''v_max_u32 v13, v13, v{Lr+11}
              v_cmp_eq_u32 vcc, v15, v13''')
        self.spin_back(top)
        self.stamp(12)
        for b in range(3):
            e(f'v_mfma_f32_16x16x32_bf16 {vr(GR)}, {vr(Lr+4*b)}, {vr(Lr+4*b)}, {vr(GR) if b else 0}')
        for b in range(3):
            e(f'v_mfma_f32_16x16x32_bf16 {vr(RS)}, {vr(Lr+4*b)}, {vr(ONE)}, {vr(RS) if b else 0}')
        fill = [None]*12
        fill[4] = f'v_add_f32 v{GR}, v{GR}, v{GR+2}\nv_add_f32 v{GR+1}, v{GR+1}, v{GR+3}'
        fill[5] = f'v_cndmask_b32 v{GR}, v{GR}, v{GR+1}, s[{sT2}:{sT3}]\nv_add_f32 v{RS}, v{RS}, v{RS+1}'
        fill[6] = f'v_add_f32_dpp v{GR}, v{GR}, v{GR} row_ror:1 row_mask:0xf bank_mask:0xf\nv_add_f32 v{RS+2}, v{RS+2}, v{RS+3}'
        fill[7] = f'v_add_f32_dpp v{GR}, v{GR}, v{GR} row_ror:2 row_mask:0xf bank_mask:0xf\nv_add_f32 v{RS}, v{RS}, v{RS+2}'
        fill[8] = f'v_add_f32_dpp v{GR}, v{GR}, v{GR} row_ror:4 row_mask:0xf bank_mask:0xf'
        fill[10] = f'v_add_f32_dpp v{GR}, v{GR}, v{GR} row_ror:8 row_mask:0xf bank_mask:0xf'
        k = 0
        for t in range(2):
            for s in range(2):
                for b in range(3):
                    d = D + 8*t + 4*s
                    e(f'v_mfma_f32_16x16x32_bf16 {vr(d)}, {vr(Lr+4*b)}, {vr(B1+16*b+8*s+4*t)}, {vr(d) if b else 0}')
                    if fill[k]: e(fill[k])
                    k += 1
        e(f'''v_add_f32 v{D}, v{D}, v{D+2}
              v_add_f32 v{D+5}, v{D+5}, v{D+7}
              v_add_f32 v{D}, v{D}, v{D+5}
              s_nop 1
              v_add_f32 v{D+8}, v{D+8}, v{D+10}
              s_nop 1
              v_add_f32 v{D+13}, v{D+13}, v{D+15}
              v_add_f32 v{D+8}, v{D+8}, v{D+13}''')
        self.swap_reduce(D, D+8, RS, GR)
        e(f'''ds_write_b32 v12, v{D}
              s_waitcnt lgkmcnt(0)
              s_branch L_S4_p2''')
        e('''L_S4_hi:
             s_waitcnt vmcnt(0)''')
        w2reads()
        e('''s_waitcnt lgkmcnt(0)
             s_barrier''')
        csread()
        e('L_S4_p2:')
        e(f'''s_barrier
              ds_read2_b32 v[{A}:{A+1}], v8 offset0:32 offset1:48
              ds_read2_b32 v[{A+2}:{A+3}], v8 offset0:96 offset1:112
              ds_read2_b32 v[{A+4}:{A+5}], v8 offset0:160 offset1:176
              ds_read2st64_b32 v[{A+6}:{A+7}], v7 offset0:0 offset1:1
              ds_read_b32 v{A+8}, v7 offset:512''')
        self.stamp(13)
        e(f'''v_mov_b32 v{A+10}, {hex(f2u(1/576))}
              v_mov_b32 v{A+11}, {hex(f2u(1/576))}
              v_mov_b32 v{A+15}, s{sTAG}
              s_waitcnt lgkmcnt(2)
              v_pk_add_f32 v[{A}:{A+1}], v[{A}:{A+1}], v[{A+2}:{A+3}]
              v_pk_add_f32 v[{A}:{A+1}], v[{A}:{A+1}], v[{A+4}:{A+5}]
              v_pk_mul_f32 v[{A}:{A+1}], v[{A}:{A+1}], v[{A+10}:{A+11}]
              v_fma_f32 v{A+1}, -v{A}, v{A}, v{A+1}
              v_add_f32 v{A+1}, {hex(f2u(1e-5))}, v{A+1}
              v_rsq_f32 v{A+1}, v{A+1}
              s_waitcnt lgkmcnt(0)
              v_add_f32 v{A+6}, v{A+6}, v{A+7}
              v_fma_f32 v{A+8}, -v{A}, v14, v{A+8}
              v_add_f32 v{A+6}, v{A+6}, v{A+8}
              v_mul_f32 v{A+6}, v{A+6}, v{A+1}
              v_mul_f32 v{A+7}, {hex(f2u(-math.log2(math.e)))}, v{A+6}
              v_exp_f32 v{A+7}, v{A+7}
              s_nop 0
              v_add_f32 v{A+7}, 1.0, v{A+7}
              v_rcp_f32 v{A+7}, v{A+7}
              s_nop 0
              v_mul_f32 v{A+6}, v{A+6}, v{A+7}
              s_nop 1
              v_mov_b32_dpp v{A+7}, v{A+6} quad_perm:[1,1,3,3] row_mask:0xf bank_mask:0xf
              v_cvt_pk_bf16_f32 v{A+6}, v{A+6}, v{A+7}
              s_nop 1''')
        for rho in range(4):
            e(f'v_mov_b32_dpp v{A+rho}, v{A+6} row_newbcast:{2*rho} row_mask:0xf bank_mask:0xf')
        e('s_nop 1')
        O = 144
        for t in range(6):
            e(f'v_mfma_f32_16x16x32_bf16 {vr(O+4*t)}, {vr(A)}, {vr(B2+4*t)}, 0')
        e(f'''s_nop 3
              v_cvt_pk_bf16_f32 v{A+12}, v{O}, v{O+4}
              s_nop 0
              v_cvt_pk_bf16_f32 v{A+13}, v{O+8}, v{O+12}
              s_nop 0
              v_cvt_pk_bf16_f32 v{A+14}, v{O+16}, v{O+20}
              buffer_store_dwordx4 {vr(A+12)}, v9, {srd(sWS)}, s{sT4} offen sc1''')
        self.stamp(14)
        self.end()

    def fin(self):
        e = self.e
        G, HF, A, D = 16, 56, 64, 68
        e('''L_FIN:
             s_barrier''')
        self.clear_check(4, G)
        e(f'''s_mul_i32 s{sT0}, s{sXC}, 3
              s_add_u32 s{sT0}, s{sT0}, s{sY}
              s_sub_u32 s{sU}, s{sT0}, 11
              s_lshr_b32 s{sT0}, s{sU}, 2
              s_and_b32 s{sT1}, s{sU}, 3
              s_mul_i32 s{sT2}, s{sT0}, 192
              s_lshl_b32 s{sT3}, s{sT1}, 3
              s_add_u32 s{sT2}, s{sT2}, s{sT3}
              s_add_u32 s{sT3}, s{sT2}, {H56}
              s_lshl_b32 s{sT4}, s{sU}, 6
              s_add_u32 s{sT4}, s{sT4}, {H7}
              v_lshrrev_b32 v4, 2, v1
              v_and_b32 v5, 3, v1
              v_lshl_add_u32 v6, v4, 2, v2
              v_mul_u32_u24 v7, 1152, v6
              v_lshl_add_u32 v7, v5, 1, v7
              v_mov_b32 v8, {OOB}
              v_cmp_gt_u32 vcc, 2, v4
              v_mul_u32_u24 v9, 1536, v6
              v_lshl_add_u32 v9, v5, 4, v9
              v_cndmask_b32 v7, v8, v7, vcc
              v_lshlrev_b32 v10, 7, v2
              v_lshl_add_u32 v10, v5, 1, v10
              v_cmp_eq_u32 vcc, 0, v4
              v_and_b32 v12, 1, v1
              v_lshlrev_b32 v12, 4, v12
              v_cndmask_b32 v10, v8, v10, vcc
              v_cmp_gt_u32 vcc, 2, v2
              v_mov_b32 v13, 0x3f80
              v_lshlrev_b32 v13, v12, v13
              v_cndmask_b32 v10, v8, v10, vcc
              v_cmp_eq_u32 vcc, 0, v2
              v_lshrrev_b32 v12, 1, v1
              v_mov_b32 v{A+3}, 0
              v_cndmask_b32 v11, v8, v10, vcc''')
        for rho in range(3):
            e(f'''v_cmp_eq_u32 vcc, {rho}, v12
                  s_nop 1
                  v_cndmask_b32 v{A+rho}, 0, v13, vcc''')
        e(f'''v_mov_b32 v14, 0xffff
              v_mov_b32 v15, s{sTAG}''')
        self.spin_init()
        top = self.lab('L_poll')
        e(f'{top}:')
        for t in range(6):
            e(f'buffer_load_ushort v{G+t}, v7, {srd(sWS)}, s{sT3} offen offset:{32*t} sc1')
        e(f'''s_waitcnt vmcnt(0)
              v_max3_u32 v12, v{G}, v{G+1}, v{G+2}
              v_max3_u32 v12, v12, v{G+3}, v{G+4}
              v_max_u32 v12, v12, v{G+5}
              v_cmp_eq_u32 vcc, v14, v12''')
        self.spin_back(top)
        self.stamp(12)
        for k in range(3):
            e(f'v_lshl_or_b32 v{HF+k}, v{G+2*k+1}, 16, v{G+2*k}')
        e(f'v_mov_b32 v{HF+3}, 0')
        for i in range(1, 9):
            e(f'v_add_u32 v{72+i}, {i*16*1536}, v9')
        self.spin_init()
        top = self.lab('L_poll')
        e(f'{top}:')
        for i in range(9):
            e(f'buffer_load_dwordx4 {vr(G+4*i)}, v{72+i if i else 9}, {srd(sWS)}, s{sT4} offen sc1')
        e(f'v_mfma_f32_16x16x32_bf16 {vr(D)}, {vr(A)}, {vr(HF)}, 0')
        for i in range(9):
            e(f's_waitcnt vmcnt({8-i})')
            e(f'v_mfma_f32_16x16x32_bf16 {vr(D)}, {vr(A)}, {vr(G+4*i)}, {vr(D)}')
            if i == 0: e(f'v_xor_b32 v12, v15, v{G+3}')
            else: e(f'v_bitop3_b32 v12, v12, v{G+4*i+3}, v15 bitop3:0xf6')
        e('v_cmp_ne_u32 vcc, 0, v12')
        self.spin_back(top)
        self.stamp(13)
        e('s_nop 4')
        for k in (4, 8):
            for r in range(4):
                e(f'v_add_f32_dpp v{D+r}, v{D+r}, v{D+r} row_ror:{k} row_mask:0xf bank_mask:0xf')
        e(f'''v_cvt_pk_bf16_f32 v12, v{D}, v{D+1}
              v_cvt_pk_bf16_f32 v13, v{D+2}, v{D+3}
              buffer_store_short v12, v10, {srd(sOUT)}, s{sT2} offen
              buffer_store_short_d16_hi v12, v10, {srd(sOUT)}, s{sT2} offen offset:32
              buffer_store_short v13, v11, {srd(sOUT)}, s{sT2} offen offset:64
              buffer_store_short_d16_hi v13, v11, {srd(sOUT)}, s{sT2} offen offset:96''')
        self.stamp(14)
        e(f'''s_cmp_lg_u32 s{sU}, 0
              s_cbranch_scc1 L_end
              v_cmp_eq_u32 vcc, 0, v0
              v_mov_b32 v4, 0
              s_nop 0
              v_cndmask_b32 v4, v8, v4, vcc
              buffer_store_dword v15, v4, {srd(sWS)}, 0 offen''')
        self.end()

    def x_path(self):
        e = self.e
        e(f'''L_X:
              s_sub_u32 s{sY}, s{sY}, 16
              s_lshr_b32 s{sH}, s{sY}, 1
              s_lshl_b32 s{sT0}, s{sXC}, 3
              s_add_u32 s{sH}, s{sH}, s{sT0}
              s_and_b32 s{sJ}, s{sY}, 1
              s_cmp_ge_u32 s{sW}, 4
              s_cbranch_scc1 L_PV''')
        K, Q, D = 128, 64, 16
        e(f'''v_lshlrev_b32 v4, 4, v0
              s_lshl_b32 s{sT0}, s{sH}, 17
              s_lshl_b32 s{sT1}, s{sW}, 15
              s_add_u32 s{sT0}, s{sT0}, s{sT1}
              s_mul_i32 s{sT1}, s{sW}, {32*1040}
              s_mov_b32 m0, s{sT1}''')
        if self.c.stagger:
            e(f'''s_lshl_b32 s{sT2}, s{sJ}, 14
                  s_add_u32 s{sT3}, s{sT0}, s{sT2}''')
            self.dma_loop(16, 4, sCKV, sT3, 1024, 1040)
            e(f'''s_xor_b32 s{sT2}, s{sT2}, 16384
                  s_add_u32 s{sT3}, s{sT0}, s{sT2}''')
            self.dma_loop(16, 4, sCKV, sT3, 1024, 1040)
        else:
            self.dma_loop(32, 4, sCKV, sT0, 1024, 1040)
        self.stamp(1)
        e(f'''v_and_b32 v5, 7, v1
              v_lshrrev_b32 v6, 3, v1
              v_lshl_add_u32 v5, v5, 1, v6
              v_mul_u32_u24 v5, 1040, v5
              v_lshl_add_u32 v5, v2, 8, v5
              v_add_u32 v5, s{sT1}, v5
              v_mul_u32_u24 v6, 1040, v1
              v_lshl_add_u32 v6, v2, 8, v6
              v_add_u32 v6, {L_QA}, v6
              v_lshlrev_b32 v7, 2, v1
              v_add_u32 v7, {L_MX}, v7
              s_lshl_b32 s{sT2}, s{sW}, 10
              s_add_u32 s{sT2}, s{sT2}, {L_PB}
              v_add_u32 v8, s{sT2}, v4
              v_mov_b32 v9, 0xff800000''')
        self.get_tag()
        e('ds_write_b32 v7, v9')
        n = self.c.x_n
        assert n <= 16
        e('s_waitcnt vmcnt(16)')
        for s in range(16): e(f'ds_read_b128 {vr(K+4*s)}, v5 offset:{16*s}')
        e(f'''s_waitcnt vmcnt({n})
              s_barrier''')
        self.stamp(2)
        e('s_waitcnt vmcnt(0)')
        self.stamp(3)
        for s in range(16): e(f'ds_read_b128 {vr(K+64+4*s)}, v5 offset:{16640+16*s}')
        e('''s_waitcnt lgkmcnt(0)
             s_barrier''')
        self.stamp(4)
        PRE = 12
        for s in range(PRE): e(f'ds_read_b128 {vr(Q+4*s)}, v6 offset:{16*s}')
        for s in range(16):
            issued = min(16, PRE + s)
            e(f's_waitcnt lgkmcnt({issued-1-s})')
            for t in range(2):
                e(f'v_mfma_f32_16x16x32_bf16 {vr(D+4*t)}, {vr(K+64*t+4*s)}, {vr(Q+4*s)}, {vr(D+4*t) if s else 0}')
            if PRE + s < 16: e(f'ds_read_b128 {vr(Q+4*(PRE+s))}, v6 offset:{16*(PRE+s)}')
        e(f'''s_nop 6
              v_max3_f32 v9, v{D}, v{D+1}, v{D+2}
              v_max3_f32 v9, v9, v{D+3}, v{D+4}
              v_max3_f32 v9, v9, v{D+5}, v{D+6}
              v_max_f32 v9, v9, v{D+7}
              ds_max_f32 v7, v9
              s_waitcnt lgkmcnt(0)
              s_barrier
              ds_read_b32 v12, v7''')
        self.stamp(5)
        e('s_waitcnt lgkmcnt(0)')
        for k in range(8): e(f'v_sub_f32 v{D+k}, v{D+k}, v12')
        for k in range(8): e(f'v_exp_f32 v{D+k}, v{D+k}')
        for k in range(4): e(f'v_cvt_pk_bf16_f32 v{D+8+k}, v{D+2*k}, v{D+2*k+1}')
        e(f'''ds_write_b128 v8, {vr(D+8)}
              s_waitcnt lgkmcnt(0)
              s_barrier''')
        self.stamp(6)
        sk = self.lab('L_nostat')
        e(f'''s_cmp_lg_u32 s{sW}, 0
              s_cbranch_scc1 {sk}''')
        for s in range(1, 4): e(f'ds_read_b128 {vr(D+8+4*s)}, v8 offset:{1024*s}')
        e(f'''v_mov_b32 v10, 0x3f803f80
              v_mov_b32 v13, 0
              v_mov_b32 v14, s{sTAG}
              v_mov_b32 v15, s{sTAG}
              v_mov_b32 v11, {OOB}
              v_cmp_gt_u32 vcc, 16, v0
              s_lshl_b32 s{sT2}, s{sH}, 9
              s_lshl_b32 s{sT3}, s{sJ}, 8
              s_add_u32 s{sT2}, s{sT2}, s{sT3}
              s_add_u32 s{sT2}, s{sT2}, {ST}
              v_cndmask_b32 v11, v11, v4, vcc''')
        for k in range(16):
            if k in (4, 8, 12): e(f's_waitcnt lgkmcnt({2-(k//4-1)})')
            e(f'v_dot2_f32_bf16 v13, v{D+8+k}, v10, v13')
        e('s_nop 2')
        for sw in ('16', '32'):
            e(f'''v_mov_b32 v9, v13
                  s_nop 1
                  v_permlane{sw}_swap_b32 v13, v9
                  v_add_f32 v13, v13, v9''')
        e(f'buffer_store_dwordx4 v[12:15], v11, {srd(sWS)}, s{sT2} offen sc1')
        self.stamp(7)
        e(f'{sk}:')
        e('s_branch L_X_D')
        V, G, P, DD = 128, 16, 48, 64
        e(f'''L_PV:
              s_sub_u32 s{sT4}, s{sW}, 4
              v_lshlrev_b32 v4, 18, v2
              v_lshl_add_u32 v4, v1, 4, v4
              s_lshl_b32 s{sT0}, s{sJ}, 20
              s_lshl_b32 s{sT1}, s{sT4}, 14
              s_add_u32 s{sT0}, s{sT0}, s{sT1}
              s_lshl_b32 s{sT1}, s{sH}, 8
              s_add_u32 s{sT0}, s{sT0}, s{sT1}
              s_add_u32 s{sT0}, s{sT0}, {PAY}
              s_add_u32 s{sT1}, s{sT0}, 65536
              s_add_u32 s{sT2}, s{sT0}, {2*65536}
              s_add_u32 s{sT3}, s{sT0}, {3*65536}''')
        for k in range(4): e(f'v_mov_b32 v{G+k}, -1')
        for r in range(4): e(f'buffer_store_dwordx4 {vr(G)}, v4, {srd(sWS)}, s{sT0+r} offen sc1')
        e(f'''v_and_b32 v5, 1, v2
              v_lshlrev_b32 v5, 3, v5
              v_lshrrev_b32 v6, 2, v1
              v_lshl_add_u32 v5, v6, 1, v5
              v_lshrrev_b32 v6, 1, v2
              v_add_u32 v5, v5, v6
              v_mul_u32_u24 v5, 1040, v5
              v_and_b32 v6, 3, v1
              v_lshl_add_u32 v5, v6, 3, v5
              s_lshl_b32 s{sT5}, s{sT4}, 8
              v_add_u32 v5, s{sT5}, v5
              v_add_u32 v6, {64*1040}, v5
              v_lshlrev_b32 v7, 4, v0
              v_add_u32 v12, 4096, v7
              v_add_u32 v13, {L_PB}, v7
              s_mul_i32 s{sT5}, s{sT4}, {4*1040}
              s_add_u32 s{sT5}, s{sT5}, {L_QA}
              v_lshl_add_u32 v8, v0, 3, s{sT5}
              v_add_u32 v9, 1040, v8
              v_add_u32 v10, 2080, v8
              v_add_u32 v11, 3120, v8
              s_lshl_b32 s{sT5}, s{sJ}, 15
              s_lshl_b32 s{sU}, s{sT4}, 13
              s_add_u32 s{sT5}, s{sT5}, s{sU}
              s_add_u32 s{sT5}, s{sT5}, {H2}''')
        self.get_tag()
        e(f'v_mov_b32 v15, s{sTAG}')
        self.spin_init()
        def loads():
            for i in range(8):
                e(f'buffer_load_dwordx4 {vr(G+4*i)}, v{7 if i < 4 else 12}, {srd(sWS)}, s{sT5} offen offset:{1024*(i&3)} sc1')
        def trreads(a):
            for s in range(4):
                for T in range(8):
                    e(f'ds_read_b64_tr_b16 {vr(V+16*T+4*s+2*a,2)}, v{5 if s < 2 else 6} offset:{(32*(s&1)+16*a)*1040+32*T}')
        e('s_barrier')
        loads()
        self.stamp(2)
        trreads(0)
        chk = self.lab('L_chk'); top = self.lab('L_poll')
        e(f's_branch {chk}\n{top}:')
        loads()
        e(f'{chk}:')
        for i in range(8):
            e(f's_waitcnt vmcnt({7-i})')
            e(f'v_bitop3_b32 v{P+i}, v{G+4*i+1}, v{G+4*i+3}, v15 bitop3:0x7e')
            e(f'ds_write2_b32 v{8+(i>>1)}, v{G+4*i}, v{G+4*i+2} offset0:{128*(i&1)} offset1:{128*(i&1)+1}')
        e(f'''v_or3_b32 v{P}, v{P}, v{P+1}, v{P+2}
              v_or3_b32 v{P+3}, v{P+3}, v{P+4}, v{P+5}
              v_or3_b32 v{P}, v{P}, v{P+6}, v{P+7}
              v_or_b32 v{P}, v{P}, v{P+3}
              v_cmp_ne_u32 vcc, 0, v{P}
              s_waitcnt lgkmcnt(0)''')
        self.spin_back(top)
        self.stamp(3)
        e('s_barrier')
        self.stamp(4)
        trreads(1)
        e('''s_barrier
             s_waitcnt lgkmcnt(0)
             s_barrier''')
        for s in range(4): e(f'ds_read_b128 {vr(P+4*s)}, v13 offset:{1024*s}')
        self.stamp(6)
        def cvt(Tp):
            for r in range(4):
                e(f'v_cvt_pk_bf16_f32 v{G+4*r+Tp}, v{DD+8*Tp+r}, v{DD+8*Tp+4+r}')
        for Tp in range(4):
            for s in range(4):
                if Tp == 0: e(f's_waitcnt lgkmcnt({3-s})')
                for T in (2*Tp, 2*Tp+1):
                    e(f'v_mfma_f32_16x16x32_bf16 {vr(DD+4*T)}, {vr(P+4*s)}, {vr(V+16*T+4*s)}, {vr(DD+4*T) if s else 0}')
            if Tp: cvt(Tp-1)
        e('s_nop 3')
        for r in range(4):
            e(f'''v_cvt_pk_bf16_f32 v{G+4*r+3}, v{DD+24+r}, v{DD+28+r}
                  buffer_store_dwordx4 {vr(G+4*r)}, v4, {srd(sWS)}, s{sT0+r} offen sc1''')
        self.stamp(7)
        e(f'''L_X_D:
              s_barrier
              s_cmp_ge_u32 s{sW}, 6
              s_cbranch_scc1 L_end
              s_mov_b32 s{sU}, s{sY}''')
        self.stamp(8)
        self.s4_issue()

    def dump(self):
        e = self.e
        e(f'''L_dump:
              s_memrealtime s[{sST+30}:{sST+31}]
              s_waitcnt lgkmcnt(0)
              s_lshl_b32 s{sT0}, s2, 3
              s_add_u32 s{sT0}, s{sT0}, s{sW}
              s_lshl_b32 s{sT0}, s{sT0}, 6
              s_add_u32 s{sT0}, s{sT0}, {DBG}
              v_mov_b32 v4, 0
              s_mov_b64 exec, 1''')
        for i in range(16):
            e(f'''v_mov_b32 v5, s{sST+2*i}
                  buffer_store_dword v5, v4, {srd(sWS)}, s{sT0} offen offset:{4*i}''')
        if self.c.hold:
            c = self.c
            e(f'''s_sub_u32 s{sT0}, s{sST+2*c.hi}, s{sST}
                  s_cmp_eq_u32 s{sST+2*c.hi}, 0
                  s_cselect_b32 s{sT0}, 0, s{sT0}
                  s_lshr_b32 s{sT1}, s2, 3
                  s_cmp_lt_u32 s{sT1}, {c.hy0}
                  s_cbranch_scc1 L_exit
                  s_cmp_ge_u32 s{sT1}, {c.hy1}
                  s_cbranch_scc1 L_exit
                  s_cmp_lt_u32 s{sW}, {c.hw0}
                  s_cbranch_scc1 L_exit
                  s_cmp_ge_u32 s{sW}, {c.hw1}
                  s_cbranch_scc1 L_exit
                  s_cmp_lg_u32 s{sXC}, {c.hx if c.hx >= 0 else f's{sXC}'}
                  s_cbranch_scc1 L_exit
                  s_min_u32 s{sT0}, s{sT0}, 10000
                  s_mul_i32 s{sT0}, s{sT0}, {c.hk}
                  s_add_u32 s{sT0}, s{sT0}, {c.hold}
                  L_hold:
                  s_sleep 4
                  s_memrealtime s[{sT2}:{sT3}]
                  s_waitcnt lgkmcnt(0)
                  s_sub_u32 s{sT2}, s{sT2}, s{sST}
                  s_cmp_lt_u32 s{sT2}, s{sT0}
                  s_cbranch_scc1 L_hold''')
        e('s_endpgm')

    def build(self):
        e = self.e
        if self.c.stamps:
            for i in range(1, 16): e(f's_mov_b32 s{sST+2*i}, 0')
        self.prologue()
        self.s1a()
        self.y_rest()
        self.s1b()
        self.s3a()
        self.s3b()
        self.fin()
        self.x_path()
        self.s4()
        if self.c.stamps: self.dump()
        e('''L_exit:
             s_endpgm
             L_codeend:''')
        body = self.L
        nh = hazard.check(body)
        hdr = open('cdna_kernels/' + KN[:-7] + '.s.ref').read().split('; Override')[0]
        out = hdr + f'''; Single persistent launch, one workgroup per CU; generated by a script of my own (stage map in the labels).
; @launch grid=(256,1,1) block=(512,1,1) lds={LDS_SIZE}
.amdgcn_target "amdgcn-amd-amdhsa--gfx950"
.text
.globl {KN}
.p2align 8
.type {KN},@function
{KN}:
''' + '\n'.join(body) + f'''
.section .rodata,"a"
.p2align 6
.amdhsa_kernel {KN}
  .amdhsa_next_free_vgpr 256
  .amdhsa_next_free_sgpr {96 if self.c.stamps else 64}
  .amdhsa_accum_offset 256
  .amdhsa_group_segment_fixed_size 0
  .amdhsa_kernarg_size 96
  .amdhsa_user_sgpr_count 2
  .amdhsa_user_sgpr_kernarg_segment_ptr 1
  .amdhsa_system_sgpr_workgroup_id_x 1
.end_amdhsa_kernel
'''
        return out, nh

if __name__ == '__main__':
    cfg = Cfg()
    out = sys.argv[1]
    for a in sys.argv[2:]:
        k, v = a.split('=')
        setattr(cfg, k, type(getattr(Cfg, k))(int(v, 0)))
    s, nh = Gen(cfg).build()
    open(out, 'w').write(s)
    print('written', out, 'hazards', nh)
```

```python
import sys, struct, math
import hazard

KN = 'sequential_preLN__compressed_kv_cla__dense_activation_silu__decode_kernel'

class Cfg:
    stamps = False
    nt = True
    x_n = 16
    s1b_n = 4
    stagger = True
    prefetch_code = True
    spin = 0x10000
    sl_h1 = 0
    sl_h2 = 2
    sl_st = 2
    sl_pay = 0
    sl_h4 = 0
    sl_h56 = 1
    sl_h7 = 0
    x_tagfirst = 1
    x_sleep = 0
    hold = 0
    hk = 0
    hi = 15
    hy0 = 0
    hy1 = 32
    hw0 = 0
    hw1 = 8
    hx = -1
    bwtest = 0

H1 = 0x1000; H2 = 0x21000; ST = 0x90000; H4 = 0x39000; H56 = 0x49000; H7 = 0x4C000
STS = 640
PAY = 0x100000; DBG = 0x300000; WS_SIZE = 0x340000
OOB = 0x7ff00000
L_CKV = 0; L_QA = 133120; L_PB = 149760
L_WO = 0; L_W1 = 0; L_W2 = 38016; L_WUK = 77824; L_WUV = 110592
L_MX = 153856; L_CB = 153984; L_EX = 155264; L_CS = 156288; L_LS = 157312; L_ML = 158592
LDS_SIZE = 158720

sX, sCKV, sWQ, sWUK, sWUV, sWO, sW1, sW2, sOUT, sWS = 4, 8, 12, 16, 20, 24, 28, 32, 36, 40
sTAG, sW, sXC, sY, sH, sJ = 44, 45, 46, 47, 48, 49
sT0, sT1, sT2, sT3, sT4, sT5 = 50, 51, 52, 53, 54, 55
sU, sCNT, sSPIN = 56, 57, 58
sST = 60

def f2u(x): return struct.unpack('<I', struct.pack('<f', x))[0]
def srd(b): return f's[{b}:{b+3}]'
def vr(b, n=4): return f'v[{b}:{b+n-1}]' if n > 1 else f'v{b}'

class Gen:
    def __init__(self, cfg):
        self.c = cfg; self.L = []; self.nlab = 0; self.stampnames = {}
    def e(self, s):
        for ln in s.strip('\n').split('\n'):
            ln = ln.strip()
            if ln: self.L.append(('' if ln.endswith(':') else '    ') + ln)
    def lab(self, p='L'):
        self.nlab += 1; return f'{p}_{self.nlab}'
    def stamp(self, i, name=None):
        if self.c.stamps:
            self.e(f's_memrealtime s[{sST+2*i}:{sST+2*i+1}]')
    def end(self):
        if self.c.stamps: self.e('s_branch L_dump')
        else: self.e('s_endpgm')
    @property
    def NT(self): return ' nt' if self.c.nt else ''
    def spin_init(self): self.e(f's_mov_b32 s{sSPIN}, {self.c.spin}')
    def spin_back(self, top, sleep=0):
        done = self.lab('L_ok')
        self.e(f'''s_cbranch_vccz {done}
                   {f's_sleep {sleep}' if sleep else ''}
                   s_sub_u32 s{sSPIN}, s{sSPIN}, 1
                   s_cbranch_scc0 {top}
                   {done}:''')
    def dma_loop(self, n, vaddr, srdb, sOff, dOff, dM0):
        top = self.lab('L_dma')
        self.e(f'''s_mov_b32 s{sCNT}, {n-1}
                   {top}:
                   buffer_load_dwordx4 v{vaddr}, {srd(srdb)}, s{sOff} offen{self.NT} lds
                   s_add_u32 m0, m0, {dM0}
                   s_add_u32 s{sOff}, s{sOff}, {dOff}
                   s_sub_u32 s{sCNT}, s{sCNT}, 1
                   s_cbranch_scc0 {top}''')
    def swap_reduce(self, v0, v1, v2, v3):
        self.e(f'''s_nop 1
                   v_permlane32_swap_b32 v{v0}, v{v2}
                   v_permlane32_swap_b32 v{v1}, v{v3}
                   v_add_f32 v{v0}, v{v0}, v{v2}
                   v_add_f32 v{v1}, v{v1}, v{v3}
                   s_nop 1
                   v_permlane16_swap_b32 v{v0}, v{v1}
                   v_add_f32 v{v0}, v{v0}, v{v1}''')
    def allreduce(self, op, v, t, ks=(1, 2, 4, 8)):
        for k in ks:
            self.e(f'''s_nop 1
                       {op}_dpp v{v}, v{v}, v{v} row_ror:{k} row_mask:0xf bank_mask:0xf''')
        for sw in ('16', '32'):
            self.e(f'''v_mov_b32 v{t}, v{v}
                       s_nop 1
                       v_permlane{sw}_swap_b32 v{v}, v{t}
                       {op} v{v}, v{v}, v{t}''')

    def prologue(self):
        e = self.e
        e(f'''s_cmp_ge_u32 s2, 256
              s_cbranch_scc1 L_exit''')
        self.stamp(0)
        for b, off in ((sX, 0), (sWQ, 16), (sCKV, 8), (sWUK, 24), (sWS, 88), (sWUV, 32), (sWO, 40)):
            e(f's_load_dwordx2 s[{b}:{b+1}], s[0:1], {off}')
        e('''v_lshrrev_b32 v1, 6, v0
             v_and_b32 v0, 63, v0''')
        e(f'v_readfirstlane_b32 s{sW}, v1')
        e('''v_and_b32 v1, 15, v0
             v_lshrrev_b32 v2, 4, v0''')
        for b, sz in ((sX, 1152), (sCKV, 8192*1024), (sWQ, 576*8192), (sWUK, 512*8192), (sWUV, 512*8192),
                      (sWO, 4096*1152), (sW1, 576*9216), (sW2, 4608*1152), (sOUT, 1152), (sWS, WS_SIZE)):
            e(f'''s_mov_b32 s{b+2}, {sz}
                  s_mov_b32 s{b+3}, 0x20000''')
        e(f'''s_and_b32 s{sXC}, s2, 7
              s_lshr_b32 s{sY}, s2, 3
              s_lshr_b32 s{sH}, s{sY}, 2
              s_lshl_b32 s{sT0}, s{sXC}, 2
              s_add_u32 s{sH}, s{sH}, s{sT0}
              s_and_b32 s{sJ}, s{sY}, 3
              s_waitcnt lgkmcnt(0)''')
        for b, off in ((sW1, 56), (sW2, 64), (sOUT, 72)):
            e(f's_load_dwordx2 s[{b}:{b+1}], s[0:1], {off}')
        if self.c.bwtest:
            e(f'''s_waitcnt lgkmcnt(0)
                  s_lshl_b32 s{sT0}, s2, 3
                  s_add_u32 s{sT0}, s{sT0}, s{sW}
                  s_lshl_b32 s{sT0}, s{sT0}, 11
                  s_add_u32 s{sT1}, s{sT0}, {4<<20}
                  v_lshlrev_b32 v4, 4, v0''')
            k = 0
            for b, so in ((sWQ, sT0), (sWUK, sT0), (sCKV, sT0), (sCKV, sT1), (sWUV, sT0), (sWO, sT0), (sW1, sT0), (sW2, sT0)):
                for o in (0, 1024):
                    e(f'buffer_load_dwordx4 {vr(16+4*k)}, v4, {srd(b)}, s{so} offen offset:{o}' + (' nt' if self.c.bwtest == 1 else ''))
                    k += 1
            e(f'''s_waitcnt vmcnt(0)
                  s_memrealtime s[92:93]''')
        e(f'''s_load_dword s{sTAG}, s[{sWS}:{sWS+1}], 0
              s_cmp_ge_u32 s{sY}, 16
              s_cbranch_scc1 L_X
              s_cmp_lg_u32 s{sW}, 0
              s_cbranch_scc1 L_Y_not0''')
    def get_tag(self):
        self.e(f'''s_waitcnt lgkmcnt(0)
                   s_or_b32 s{sTAG}, s{sTAG}, 0x40004000
                   s_add_u32 s{sTAG}, s{sTAG}, 1
                   s_and_b32 s{sTAG}, s{sTAG}, 0xbfffbfff''')

    def s1a(self):
        e = self.e
        XS, X1, XR, SEL, A0, D, WQ = 8, 12, 16, 40, 48, 56, 112
        e(f'''v_lshlrev_b32 v5, 4, v0
              v_lshlrev_b32 v6, 2, v0
              s_mul_i32 s{sT0}, s{sJ}, 288
              v_mul_u32_u24 v4, 72, v2
              buffer_load_dwordx4 {vr(XS)}, v5, {srd(sX)}, 0 offen
              buffer_load_dword v{X1}, v6, {srd(sX)}, 0 offen offset:1024''')
        for k in range(4):
            e(f'buffer_load_dwordx4 {vr(XR+4*k)}, v4, {srd(sX)}, s{sT0} offen offset:{16*k}')
        e(f'buffer_load_dwordx2 {vr(XR+16,2)}, v4, {srd(sX)}, s{sT0} offen offset:64')
        e(f'''v_mul_u32_u24 v7, {36*8192}, v2
              v_lshl_add_u32 v7, v1, 4, v7
              s_mul_i32 s{sT1}, s{sJ}, {144*8192}
              s_lshl_b32 s{sT2}, s{sH}, 8
              s_add_u32 s{sT1}, s{sT1}, s{sT2}''')
        for t in range(36):
            e(f'buffer_load_dwordx4 {vr(WQ+4*t)}, v7, {srd(sWQ)}, s{sT1} offen{self.NT}')
            if t < 35: e(f's_addk_i32 s{sT1}, 8192')
        e('s_barrier')
        self.stamp(1)
        e(f'''v_and_b32 v34, 2, v1
              v_cmp_ne_u32 vcc, 0, v34
              v_mov_b32 v35, 0x0504
              v_mov_b32 v36, 0x0706
              v_mov_b32 v37, 0x0100
              v_cndmask_b32 v35, v35, v37, vcc
              v_cndmask_b32 v36, v36, v37, vcc
              v_and_b32 v34, 1, v1
              v_lshlrev_b32 v34, 4, v34
              v_xor_b32 v35, 0x0c0c, v35
              v_xor_b32 v36, 0x0c0c, v36
              v_lshlrev_b32 v35, v34, v35
              v_lshlrev_b32 v36, v34, v36
              v_xor_b32 v35, 0x0c0c0c0c, v35
              v_xor_b32 v36, 0x0c0c0c0c, v36
              v_mov_b32 v37, 0x0c0c0c0c
              v_lshrrev_b32 v34, 2, v1''')
        for rho in range(4):
            e(f'''v_cmp_eq_u32 vcc, {rho}, v34
                  s_nop 1
                  v_cndmask_b32 v{SEL+rho}, v37, v35, vcc
                  v_cndmask_b32 v{SEL+4+rho}, v37, v36, vcc''')
        e(f'''v_mov_b32 v38, 0x3f803f80
              v_mov_b32 v34, 0
              v_mov_b32 v35, 0''')
        e(f'''s_lshl_b32 s{sT2}, s{sH}, 12
              s_lshl_b32 s{sT3}, s{sJ}, 10
              s_add_u32 s{sT2}, s{sT2}, s{sT3}
              s_add_u32 s{sT2}, s{sT2}, {H1}''')
        e('s_waitcnt vmcnt(41)')
        for k in range(5):
            e(f'''v_dot2_f32_bf16 v34, v{XS+k}, v38, v34
                  v_dot2_f32_bf16 v35, v{XS+k}, v{XS+k}, v35''')
        e('s_nop 2')
        for k in (1, 2, 4, 8):
            e(f'''v_add_f32_dpp v34, v34, v34 row_ror:{k} row_mask:0xf bank_mask:0xf
                  v_add_f32_dpp v35, v35, v35 row_ror:{k} row_mask:0xf bank_mask:0xf
                  s_nop 0''')
        for sw in ('16', '32'):
            e(f'''v_mov_b32 v36, v34
                  v_mov_b32 v37, v35
                  s_nop 0
                  v_permlane{sw}_swap_b32 v34, v36
                  v_permlane{sw}_swap_b32 v35, v37
                  v_add_f32 v34, v34, v36
                  v_add_f32 v35, v35, v37''')
        cs = math.log2(math.e) / math.sqrt(128.0)
        e(f'''v_mul_f32 v34, {hex(f2u(1/576))}, v34
              v_mul_f32 v35, {hex(f2u(1/576))}, v35
              v_fma_f32 v35, -v34, v34, v35
              v_add_f32 v35, {hex(f2u(1e-5))}, v35
              v_rsq_f32 v35, v35
              s_waitcnt vmcnt(36)
              v_mul_f32 v35, {hex(f2u(cs))}, v35''')
        def perm(t):
            for rho in range(4):
                e(f'v_perm_b32 v{A0+4*(t&1)+rho}, v{XR+(t>>1)}, v38, v{SEL+4*(t&1)+rho}')
        perm(0)
        for t in range(36):
            if t < 35: perm(t+1)
            else: self.get_tag()
            e(f's_waitcnt vmcnt({35-t})')
            e(f'v_mfma_f32_16x16x32_bf16 {vr(D)}, {vr(A0+4*(t&1))}, {vr(WQ+4*t)}, {vr(D) if t else 0}')
        self.stamp(2)
        e(f'''v_mov_b32 v62, s{sTAG}
              v_mov_b32 v63, s{sTAG}
              s_nop 5
              v_fma_f32 v60, -v34, v{D+2}, v{D}
              v_fma_f32 v61, -v34, v{D+3}, v{D+1}
              v_mul_f32 v60, v60, v35
              v_mul_f32 v61, v61, v35
              buffer_store_dwordx4 v[60:63], v5, {srd(sWS)}, s{sT2} offen sc1''')
        self.stamp(3)
        e('s_branch L_Y_lo')

    def y_rest(self):
        e = self.e
        e(f'''L_Y_not0:
              s_cmp_ge_u32 s{sW}, 4
              s_cbranch_scc1 L_S1b''')
        if self.c.prefetch_code:
            sk = self.lab('L_nopf')
            e(f'''s_cmp_lg_u32 s{sW}, 1
                  s_cbranch_scc1 {sk}
                  s_getpc_b64 s[{sT0}:{sT1}]
                  L_pc:
                  s_sub_u32 s{sT0}, s{sT0}, L_pc-{KN}
                  s_subb_u32 s{sT1}, s{sT1}, 0
                  v_lshlrev_b32 v4, 7, v0
                  v_min_u32 v5, L_codeend-{KN}-4, v4
                  global_load_dword v250, v5, s[{sT0}:{sT1}]
                  v_add_u32 v4, 8192, v4
                  v_min_u32 v5, L_codeend-{KN}-4, v4
                  global_load_dword v251, v5, s[{sT0}:{sT1}]
                  {sk}:''')
        e('s_barrier')
        self.get_tag()
        e('s_branch L_Y_lo')

    def s1b(self):
        e = self.e
        W, G, V, D = 16, 48, 64, 80
        e('L_S1b:')
        sk = self.lab('L_noclr')
        e(f'''s_cmp_lg_u32 s{sW}, 4
              s_cbranch_scc1 {sk}
              s_lshl_b32 s{sT0}, s{sH}, 2
              s_add_u32 s{sT0}, s{sT0}, s{sJ}
              s_lshl_b32 s{sT0}, s{sT0}, 9
              s_add_u32 s{sT0}, s{sT0}, {H4}
              s_mul_i32 s{sT1}, s{sXC}, 1152
              s_lshl_b32 s{sT2}, s{sY}, 7
              s_add_u32 s{sT1}, s{sT1}, s{sT2}
              s_add_u32 s{sT1}, s{sT1}, {H56-512}
              s_cmp_lt_u32 s{sY}, 9
              s_cselect_b32 s{sT1}, s{sT1}, {OOB}
              v_mov_b32 v4, s{sT0}
              v_mov_b32 v5, s{sT1}
              v_mov_b32 v6, {OOB}
              v_cmp_gt_u32 vcc, 40, v0
              v_mov_b32 v8, -1
              v_mov_b32 v9, -1
              v_cndmask_b32 v5, v6, v5, vcc
              v_cmp_gt_u32 vcc, 32, v0
              v_mov_b32 v10, -1
              v_mov_b32 v11, -1
              v_cndmask_b32 v4, v5, v4, vcc
              v_lshl_add_u32 v4, v0, 4, v4
              buffer_store_dwordx4 v[8:11], v4, {srd(sWS)}, 0 offen sc1
              {sk}:''')
        e(f'''s_sub_u32 s{sT4}, s{sW}, 4
              v_lshrrev_b32 v4, 5, v0
              v_xor_b32 v4, v4, v1
              v_lshlrev_b32 v4, 4, v4
              v_lshl_add_u32 v4, v2, 13, v4
              s_lshl_b32 s{sT0}, s{sJ}, 2
              s_add_u32 s{sT0}, s{sT0}, s{sT4}
              s_lshl_b32 s{sT5}, s{sT0}, 7
              s_lshl_b32 s{sT0}, s{sT0}, 18
              s_lshl_b32 s{sT1}, s{sH}, 8
              s_add_u32 s{sT0}, s{sT0}, s{sT1}
              s_lshl_b32 s{sT1}, s{sT4}, 13
              s_add_u32 s{sT1}, s{sT1}, {L_WUK}
              s_mov_b32 m0, s{sT1}''')
        e(f'''v_and_b32 v5, 1, v2
              v_lshlrev_b32 v5, 1, v5
              v_xor_b32 v5, v5, v2
              v_lshlrev_b32 v5, 2, v5''')
        e('s_barrier')
        for i in range(8):
            if i: e(f'v_xor_b32 v6, {32*i}, v4')
            e(f'buffer_load_dwordx4 v{6 if i else 4}, {srd(sWUK)}, s{sT0} offen{self.NT} lds')
            if i < 7:
                e(f'''s_add_u32 m0, m0, 1024
                      s_add_u32 s{sT0}, s{sT0}, 32768''')
        self.stamp(1)
        e(f'''v_xor_b32 v6, v5, v1
              v_lshlrev_b32 v6, 4, v6
              v_lshl_add_u32 v6, v1, 9, v6
              v_add_u32 v8, s{sT1}, v6''')
        for s in range(1, 4): e(f'v_xor_b32 v{8+s}, {16*s}, v8')
        e(f'''v_lshrrev_b32 v6, 2, v1
              v_lshlrev_b32 v6, 4, v6
              v_and_b32 v7, 3, v1
              v_add3_u32 v6, v6, v5, v7
              v_lshlrev_b32 v12, 4, v6
              s_lshl_b32 s{sT2}, s{sH}, 12
              s_add_u32 s{sT2}, s{sT2}, {H1}''')
        e(f'''v_lshlrev_b32 v13, 3, v0
              v_mov_b32 v6, {OOB}
              v_cmp_gt_u32 vcc, 16, v0
              s_lshl_b32 s{sT3}, s{sH}, 11
              s_add_u32 s{sT3}, s{sT3}, s{sT5}
              s_add_u32 s{sT3}, s{sT3}, {H2}
              v_cndmask_b32 v13, v6, v13, vcc''')
        self.get_tag()
        e(f'v_mov_b32 v15, s{sTAG}')
        self.spin_init()
        def loads():
            for p in range(4):
                e(f'buffer_load_dwordx4 {vr(G+4*p)}, v12, {srd(sWS)}, s{sT2} offen offset:{1024*p} sc1')
        e(f's_waitcnt vmcnt({self.c.s1b_n})')
        loads()
        e('s_waitcnt vmcnt(4)')
        self.stamp(2)
        for t in range(2):
            for s in range(4):
                e(f'ds_read_b128 {vr(W+16*t+4*s)}, v{8+s} offset:{256*t}')
        chk = self.lab('L_chk'); top = self.lab('L_poll')
        e(f's_branch {chk}\n{top}:')
        loads()
        e(f'''{chk}:
              s_waitcnt vmcnt(0)
              v_bitop3_b32 v6, v{G+2}, v{G+6}, v15 bitop3:0x7e
              v_bitop3_b32 v7, v{G+10}, v{G+14}, v15 bitop3:0x7e
              v_or_b32 v6, v6, v7
              v_cmp_ne_u32 vcc, 0, v6''')
        self.spin_back(top, self.c.sl_h1)
        self.stamp(3)
        e(f'''v_pk_add_f32 {vr(G,2)}, {vr(G,2)}, {vr(G+4,2)}
              v_pk_add_f32 {vr(G+8,2)}, {vr(G+8,2)}, {vr(G+12,2)}
              v_pk_add_f32 {vr(G,2)}, {vr(G,2)}, {vr(G+8,2)}
              v_cvt_pk_bf16_f32 v6, v{G}, v{G+1}
              s_waitcnt lgkmcnt(0)
              s_nop 0''')
        def bc(s):
            for u in range(4):
                e(f'v_mov_b32_dpp v{V+4*s+u}, v6 row_newbcast:{4*u+s} row_mask:0xf bank_mask:0xf')
        bc(0)
        for s in range(4):
            if s < 3: bc(s+1)
            for t in range(2):
                e(f'v_mfma_f32_16x16x32_bf16 {vr(D+4*t)}, {vr(V+4*s)}, {vr(W+16*t+4*s)}, {vr(D+4*t) if s else 0}')
        e(f'''s_nop 7
              v_cvt_pk_bf16_f32 v14, v{D}, v{D+4}
              buffer_store_dwordx2 v[14:15], v13, {srd(sWS)}, s{sT3} offen sc1''')
        self.stamp(4)
        e('s_barrier')
        e(f'''s_cmp_lt_u32 s{sY}, 9
              s_cbranch_scc1 L_S3b
              s_cmp_lt_u32 s{sY}, 11
              s_cbranch_scc1 L_Yhi_S4
              s_cmp_ge_u32 s{sY}, 14
              s_cbranch_scc1 L_end
              s_cmp_eq_u32 s{sW}, 4
              s_cbranch_scc1 L_FIN
              L_end:''')
        self.end()
        e(f'''L_Yhi_S4:
              s_cmp_ge_u32 s{sW}, 6
              s_cbranch_scc1 L_end
              s_add_u32 s{sU}, s{sY}, 7''')
        self.s4_issue()
        e('''s_barrier
             s_branch L_S4''')

    def s3a(self):
        e = self.e
        B, PL, A, D, F, MK = 16, 48, 64, 80, 88, 104
        e('L_Y_lo:')
        e(f'''v_lshrrev_b32 v4, 2, v0
              v_and_b32 v5, 3, v0
              v_lshlrev_b32 v4, 13, v4
              v_lshl_add_u32 v4, v5, 4, v4
              s_lshl_b32 s{sT0}, s{sJ}, 20
              s_lshl_b32 s{sT1}, s{sH}, 8
              s_add_u32 s{sT0}, s{sT0}, s{sT1}
              s_lshl_b32 s{sT1}, s{sW}, 6
              s_add_u32 s{sT0}, s{sT0}, s{sT1}
              s_mul_i32 s{sT1}, s{sW}, 10240
              s_add_u32 s{sT1}, s{sT1}, {L_WUV}''')
        e('s_barrier')
        self.stamp(4)
        for j in range(8):
            e(f'''s_add_u32 m0, s{sT1}, {j*1280 + (0, 32, 128, 160)[j & 3]}
                  s_nop 0
                  buffer_load_dwordx4 v4, {srd(sWUV)}, s{sT0} offen{self.NT} lds''')
            if j < 7: e(f's_add_u32 s{sT0}, s{sT0}, {16*8192}')
        e(f'''v_lshrrev_b32 v6, 2, v1
              v_mul_u32_u24 v7, 1280, v6
              v_and_b32 v8, 1, v6
              v_lshl_add_u32 v7, v8, 5, v7
              v_lshrrev_b32 v8, 1, v6
              v_lshl_add_u32 v7, v8, 7, v7
              v_lshl_add_u32 v7, v2, 6, v7
              v_lshl_add_u32 v7, v5, 3, v7
              v_add_u32 v7, s{sT1}, v7''')
        sk = self.lab('L_nos4')
        e(f'''s_sub_u32 s{sT2}, s{sY}, 9
              s_cmp_ge_u32 s{sT2}, 2
              s_cbranch_scc1 {sk}
              s_add_u32 s{sU}, s{sY}, 7''')
        self.s4_issue()
        e(f'{sk}:')
        e(f'''v_and_b32 v8, 1, v1
              v_lshlrev_b32 v8, 4, v8
              v_mov_b32 v9, 0xffff
              v_lshlrev_b32 v9, v8, v9
              v_bfe_u32 v8, v1, 1, 2''')
        for rho in range(4):
            e(f'''v_cmp_eq_u32 vcc, {rho}, v8
                  s_nop 1
                  v_cndmask_b32 v{MK+rho}, 0, v9, vcc''')
        e(f'''v_and_b32 v8, 12, v1
              v_add_u32 v8, v8, v2
              v_mul_u32_u24 v8, {STS}, v8
              s_lshl_b32 s{sT2}, s{sH}, 4
              s_mul_i32 s{sT3}, s{sW}, {16*STS}
              s_add_u32 s{sT2}, s{sT2}, s{sT3}
              s_add_u32 s{sT2}, s{sT2}, {ST}
              v_lshlrev_b32 v9, 4, v0
              s_lshl_b32 s{sT3}, s{sH}, 2
              s_add_u32 s{sT3}, s{sT3}, s{sJ}
              s_lshl_b32 s{sT3}, s{sT3}, 2
              s_add_u32 s{sT3}, s{sT3}, s{sW}
              s_lshl_b32 s{sT4}, s{sT3}, 7
              s_add_u32 s{sT4}, s{sT4}, {H4}
              s_lshl_b32 s{sT3}, s{sT3}, 12
              s_add_u32 s{sT3}, s{sT3}, {PAY}
              s_lshl_b32 s{sT5}, s{sW}, 2
              s_add_u32 s{sT5}, s{sT5}, {L_ML}
              v_mov_b32 v10, s{sT5}
              v_mov_b32 v3, {L_ML}
              s_mul_i32 s{sT5}, s{sW}, 320
              s_add_u32 s{sT5}, s{sT5}, {L_CB}
              v_and_b32 v11, 1, v2
              v_lshlrev_b32 v11, 3, v11
              v_lshl_add_u32 v11, v1, 4, v11
              v_add_u32 v11, s{sT5}, v11
              v_mul_u32_u24 v12, 320, v5
              v_lshl_add_u32 v12, v2, 4, v12
              v_add_u32 v12, {L_CB}, v12
              v_lshlrev_b32 v13, 2, v0
              v_mov_b32 v14, {OOB}
              v_cmp_gt_u32 vcc, 16, v0
              s_waitcnt vmcnt(0)
              v_mov_b32 v15, -1
              v_cndmask_b32 v13, v14, v13, vcc''')
        self.stamp(5)
        for t in range(2):
            for s in range(4):
                for a in range(2):
                    e(f'ds_read_b64_tr_b16 {vr(B+16*t+4*s+2*a,2)}, v7 offset:{a*5120+s*256+t*32}')
        self.spin_init()
        top = self.lab('L_poll')
        e(f'''{top}:
              buffer_load_dwordx4 {vr(F)}, v8, {srd(sWS)}, s{sT2} offen sc1
              s_waitcnt vmcnt(0)
              v_cmp_ne_u32 vcc, s{sTAG}, v{F+2}''')
        self.spin_back(top, self.c.sl_st)
        def loads():
            for t in range(4):
                e(f'buffer_load_dwordx4 {vr(PL+4*t)}, v9, {srd(sWS)}, s{sT3} offen offset:{1024*t} sc1')
        loads()
        self.stamp(6)
        e(f'v_mov_b32 v{F+7}, v{F}')
        self.allreduce('v_max_f32', F+7, F+5, (4, 8))
        e(f'''v_sub_f32 v{F+4}, v{F}, v{F+7}
              v_exp_f32 v{F+4}, v{F+4}
              s_nop 0
              v_cvt_pk_bf16_f32 v{F+4}, v{F+4}, v{F+4}
              v_and_b32 v{F+6}, 0xffff0000, v{F+4}
              v_mul_f32 v{F+6}, v{F+6}, v{F+1}''')
        for t in range(4):
            for rho in range(4):
                e(f'v_and_b32_dpp v{A+4*t+rho}, v{F+4}, v{MK+rho} row_newbcast:{4*t} row_mask:0xf bank_mask:0xf')
        self.allreduce('v_add_f32', F+6, F+5, (4, 8))
        e(f'ds_write2_b32 v10, v{F+7}, v{F+6} offset0:0 offset1:4')
        chk = self.lab('L_chk'); top = self.lab('L_poll')
        self.spin_init()
        e(f's_branch {chk}\n{top}:')
        loads()
        e(f'{chk}:')
        for t in range(4):
            p = PL + 4*t
            e(f's_waitcnt vmcnt({3-t})')
            e(f'v_mfma_f32_16x16x32_bf16 {vr(D)}, {vr(A+4*t)}, {vr(p)}, {vr(D) if t else 0}')
            if t == 0:
                e(f'''v_max3_u32 v6, v{p}, v{p+1}, v{p+2}
                      v_max_u32 v6, v6, v{p+3}''')
            else:
                e(f'''v_max3_u32 v6, v6, v{p}, v{p+1}
                      v_max3_u32 v6, v6, v{p+2}, v{p+3}''')
        e(f'v_cmp_eq_u32 vcc, v15, v6')
        self.spin_back(top, self.c.sl_pay)
        self.stamp(7)
        e(f'''s_nop 3
              v_cvt_pk_bf16_f32 v{D+4}, v{D}, v{D+1}
              v_cvt_pk_bf16_f32 v{D+5}, v{D+2}, v{D+3}
              ds_write_b64 v11, {vr(D+4,2)}
              s_waitcnt lgkmcnt(0)
              s_barrier''')
        for s in range(4):
            e(f'ds_read_b128 {vr(A+4*s)}, v12 offset:{64*s}')
            if s == 0:
                e(f'''ds_read_b128 {vr(F)}, v3
                      ds_read_b128 {vr(F+4)}, v3 offset:16''')
        fill = ['', f's_waitcnt lgkmcnt(2)\nv_max3_f32 v6, v{F}, v{F+1}, v{F+2}\nv_max_f32 v6, v6, v{F+3}',
                f'v_sub_f32 v{F}, v{F}, v6\nv_sub_f32 v{F+1}, v{F+1}, v6',
                f'v_sub_f32 v{F+2}, v{F+2}, v6\nv_sub_f32 v{F+3}, v{F+3}, v6\ns_waitcnt lgkmcnt(1)',
                f'v_exp_f32 v{F}, v{F}', f'v_exp_f32 v{F+1}, v{F+1}\ns_waitcnt lgkmcnt(0)', f'v_exp_f32 v{F+2}, v{F+2}', f'v_exp_f32 v{F+3}, v{F+3}']
        e('s_waitcnt lgkmcnt(5)')
        for s in range(4):
            for t in range(2):
                e(f'v_mfma_f32_16x16x32_bf16 {vr(D+4*t)}, {vr(A+4*s)}, {vr(B+16*t+4*s)}, {vr(D+4*t) if s else 0}')
                e(fill[2*s+t])
        e(f'''v_mul_f32 v6, v{F}, v{F+4}
              v_fmac_f32 v6, v{F+1}, v{F+5}
              v_fmac_f32 v6, v{F+2}, v{F+6}
              v_fmac_f32 v6, v{F+3}, v{F+7}
              v_rcp_f32 v6, v6
              v_mul_f32 v{D}, v{D}, v{F}
              v_fmac_f32 v{D}, v{D+1}, v{F+1}
              v_mul_f32 v{D+4}, v{D+4}, v{F}
              v_fmac_f32 v{D}, v{D+2}, v{F+2}
              v_fmac_f32 v{D+4}, v{D+5}, v{F+1}
              v_fmac_f32 v{D}, v{D+3}, v{F+3}
              v_fmac_f32 v{D+4}, v{D+6}, v{F+2}
              v_mul_f32 v{D}, v{D}, v6
              v_fmac_f32 v{D+4}, v{D+7}, v{F+3}
              v_mul_f32 v{D+4}, v{D+4}, v6
              v_cvt_pk_bf16_f32 v6, v{D}, v{D+4}
              buffer_store_dword v6, v13, {srd(sWS)}, s{sT4} offen sc1''')
        self.stamp(8)
        e(f'''s_sub_u32 s{sT2}, s{sY}, 9
              s_cmp_lt_u32 s{sT2}, 2
              s_cbranch_scc1 L_S4''')
        self.end()

    def s3b(self):
        e = self.e
        B, D, G = 16, 80, 144
        e('L_S3b:')
        e(f'''v_lshrrev_b32 v4, 3, v0
              v_mul_u32_u24 v4, 1152, v4
              v_and_b32 v5, 7, v0
              v_lshl_add_u32 v4, v5, 4, v4
              s_lshl_b32 s{sT0}, s{sXC}, 2
              s_add_u32 s{sT2}, s{sT0}, s{sT4}
              s_mul_i32 s{sT0}, s{sT2}, {128*1152}
              s_lshl_b32 s{sT1}, s{sY}, 7
              s_add_u32 s{sT0}, s{sT0}, s{sT1}
              s_mul_i32 s{sT1}, s{sT4}, 16640
              s_add_u32 m0, s{sT1}, {L_WO}''')
        self.dma_loop(16, 4, sWO, sT0, 8*1152, 1040)
        e(f'''v_bfe_u32 v5, v1, 2, 1
              v_lshl_add_u32 v5, v2, 1, v5
              v_mul_u32_u24 v5, 2080, v5
              v_lshrrev_b32 v6, 3, v1
              v_lshl_add_u32 v5, v6, 7, v5
              v_and_b32 v6, 3, v1
              v_lshl_add_u32 v5, v6, 3, v5
              v_add_u32 v5, s{sT1}, v5''')
        e(f'''v_lshrrev_b32 v7, 2, v1
              v_lshl_add_u32 v7, v7, 2, v2
              v_lshlrev_b32 v7, 7, v7
              v_lshl_add_u32 v7, v6, 4, v7
              s_lshl_b32 s{sT2}, s{sT2}, 11
              s_add_u32 s{sT2}, s{sT2}, {H4}''')
        e(f'''v_lshlrev_b32 v8, 2, v0
              s_lshl_b32 s{sT3}, s{sY}, 7
              s_cmp_eq_u32 s{sXC}, 0
              s_cselect_b32 s{sT5}, s{sT3}, 4096
              v_add_u32 v9, s{sT5}, v8
              buffer_load_dword v12, v9, {srd(sX)}, 0 offen
              s_lshl_b32 s{sT5}, s{sT4}, 8
              s_add_u32 s{sT5}, s{sT5}, {L_EX}
              v_add_u32 v9, s{sT5}, v8
              v_lshlrev_b32 v10, 3, v0
              v_and_b32 v10, 0xff, v10
              v_add_u32 v10, {L_EX}, v10
              v_mov_b32 v11, {OOB}
              v_cmp_gt_u32 vcc, 32, v0
              s_mul_i32 s{sT5}, s{sXC}, 1152
              s_add_u32 s{sT3}, s{sT3}, s{sT5}
              s_add_u32 s{sT3}, s{sT3}, {H56}
              v_cndmask_b32 v8, v11, v8, vcc
              v_mov_b32 v15, -1
              s_waitcnt vmcnt(0)
              v_and_b32 v13, 0xffff0000, v12
              v_lshlrev_b32 v12, 16, v12''')
        self.stamp(5)
        for T in range(4):
            for s in range(4):
                for a in range(2):
                    e(f'ds_read_b64_tr_b16 {vr(B+16*T+4*s+2*a,2)}, v5 offset:{(s>>1)*1040+(4*(s&1)+2*a)*128+T*32}')
        e('''s_waitcnt lgkmcnt(0)
             s_barrier''')
        self.stamp(6)
        self.spin_init()
        top = self.lab('L_poll')
        e(f'''{top}:
              buffer_load_dwordx4 {vr(G)}, v7, {srd(sWS)}, s{sT2} offen sc1
              s_waitcnt vmcnt(0)
              v_max3_u32 v6, v{G}, v{G+1}, v{G+2}
              v_max_u32 v6, v6, v{G+3}
              v_cmp_eq_u32 vcc, v15, v6''')
        self.spin_back(top, self.c.sl_h4)
        self.stamp(7)
        def red(T):
            d = D + 16*T
            e(f'''v_add_f32 v{d}, v{d}, v{d+5}
                  v_add_f32 v{d+10}, v{d+10}, v{d+15}
                  v_add_f32 v{d}, v{d}, v{d+10}''')
        for T in range(4):
            for s in range(4):
                e(f'v_mfma_f32_16x16x32_bf16 {vr(D+16*T+4*s)}, {vr(G)}, {vr(B+16*T+4*s)}, 0')
            if T >= 2: red(T-2)
        e('s_nop 0')
        red(2)
        e('s_nop 0')
        red(3)
        self.swap_reduce(D, D+16, D+32, D+48)
        e(f'''ds_write_b32 v9, v{D}
              s_waitcnt lgkmcnt(0)
              s_barrier
              s_cmp_lg_u32 s{sW}, 4
              s_cbranch_scc1 L_end
              ds_read2_b64 {vr(D)}, v10 offset0:0 offset1:32
              ds_read2_b64 {vr(D+4)}, v10 offset0:64 offset1:96
              s_waitcnt lgkmcnt(1)
              v_pk_add_f32 v[12:13], v[12:13], {vr(D,2)}
              v_pk_add_f32 v[12:13], v[12:13], {vr(D+2,2)}
              s_waitcnt lgkmcnt(0)
              v_pk_add_f32 {vr(D+4,2)}, {vr(D+4,2)}, {vr(D+6,2)}
              v_pk_add_f32 v[12:13], v[12:13], {vr(D+4,2)}
              v_cvt_pk_bf16_f32 v6, v12, v13
              buffer_store_dword v6, v8, {srd(sWS)}, s{sT3} offen sc1''')
        self.stamp(8)
        self.end()

    def s4_issue(self):
        e = self.e
        sk = self.lab('L_now1')
        e(f'''s_mul_i32 s{sT2}, s{sXC}, 18
              s_add_u32 s{sU}, s{sU}, s{sT2}
              s_cmp_ge_u32 s{sW}, 3
              s_cbranch_scc1 {sk}
              v_lshrrev_b32 v120, 2, v0
              v_mul_u32_u24 v120, 9216, v120
              v_and_b32 v121, 3, v0
              v_lshl_add_u32 v120, v121, 4, v120
              s_mul_i32 s{sT2}, s{sW}, {192*9216}
              s_lshl_b32 s{sT3}, s{sU}, 6
              s_add_u32 s{sT2}, s{sT2}, s{sT3}
              s_mul_i32 s{sT3}, s{sW}, {12*1056}
              s_add_u32 m0, s{sT3}, {L_W1}''')
        self.dma_loop(12, 120, sW1, sT2, 16*9216, 1056)
        e(f'{sk}:')
        for i in range(3):
            e(f'''v_add_u32 v120, {64*i}, v0
                  v_mul_u32_u24 v121, 5462, v120
                  v_lshrrev_b32 v121, 16, v121
                  v_mul_u32_u24 v121, {1152-192}, v121
                  v_lshl_add_u32 v{122+i}, v120, 4, v121''')
        e(f'''s_mul_i32 s{sT2}, s{sU}, {32*1152}
              s_mul_i32 s{sT3}, s{sW}, 192
              s_add_u32 s{sT2}, s{sT2}, s{sT3}
              s_mul_i32 s{sT3}, s{sW}, 6144
              s_add_u32 m0, s{sT3}, {L_W2}''')
        for i in range(6):
            if i == 3: e(f's_add_u32 s{sT2}, s{sT2}, {16*1152}')
            else: e('s_nop 0')
            e(f'buffer_load_dwordx4 v{122+i%3}, {srd(sW2)}, s{sT2} offen{self.NT} lds')
            if i < 5: e('s_add_u32 m0, m0, 1024')

    def clear_check(self, va, g):
        e = self.e
        top = self.lab('L_poll')
        self.spin_init()
        e(f'''v_lshlrev_b32 v{va}, 9, v0
              s_mov_b32 s{sT2}, {H2}
              s_mov_b32 s{sT3}, {H2+32768}
              v_mov_b32 v{g+4}, s{sTAG}
              {top}:
              buffer_load_dwordx2 {vr(g,2)}, v{va}, {srd(sWS)}, s{sT2} offen sc1
              buffer_load_dwordx2 {vr(g+2,2)}, v{va}, {srd(sWS)}, s{sT3} offen sc1
              s_waitcnt vmcnt(0)
              v_bitop3_b32 v{g}, v{g+1}, v{g+3}, v{g+4} bitop3:0x7e
              v_cmp_ne_u32 vcc, 0, v{g}''')
        self.spin_back(top)

    def s4(self):
        e = self.e
        B2, B1, ONE, Lr, GR, RS, D, A = 16, 40, 88, 92, 104, 108, 112, 128
        e('L_S4:')
        self.stamp(9)
        e(f'''v_lshrrev_b32 v4, 2, v1
              v_and_b32 v5, 3, v1
              v_lshl_add_u32 v6, v2, 3, v4
              v_mul_u32_u24 v6, 192, v6
              v_lshl_add_u32 v6, v5, 3, v6
              s_mul_i32 s{sT0}, s{sW}, 6144
              s_add_u32 s{sT0}, s{sT0}, {L_W2}
              v_add_u32 v6, s{sT0}, v6
              v_and_b32 v7, 7, v1
              v_lshl_add_u32 v7, v2, 3, v7
              v_lshlrev_b32 v7, 2, v7
              v_add_u32 v7, {L_EX}, v7
              v_mov_b32 v8, {L_EX}
              v_lshlrev_b32 v9, 4, v0
              v_mov_b32 v10, {OOB}
              v_cmp_gt_u32 vcc, 16, v0
              s_mul_i32 s{sT4}, s{sU}, 1536
              s_lshl_b32 s{sT0}, s{sW}, 8
              s_add_u32 s{sT4}, s{sT4}, s{sT0}
              s_add_u32 s{sT4}, s{sT4}, {H7}
              v_cndmask_b32 v9, v10, v9, vcc
              s_cmp_ge_u32 s{sW}, 3
              s_cbranch_scc1 L_S4_hi''')
        self.clear_check(10, Lr)
        self.stamp(10)
        e(f'''v_mul_u32_u24 v10, 1056, v2
              v_lshl_add_u32 v10, v4, 6, v10
              v_lshl_add_u32 v10, v5, 3, v10
              s_mul_i32 s{sT0}, s{sW}, {12*1056}
              s_add_u32 s{sT0}, s{sT0}, {L_W1}
              v_add_u32 v10, s{sT0}, v10''')
        for b in range(3):
            for s in range(2):
                for t in range(2):
                    for a in range(2):
                        e(f'ds_read_b64_tr_b16 {vr(B1+16*b+8*s+4*t+2*a,2)}, v10 offset:{4*b*1056+(8*s+4*a)*64+t*32}')
        def w2reads():
            for t in range(6):
                for a in range(2):
                    e(f'ds_read_b64_tr_b16 {vr(B2+4*t+2*a,2)}, v6 offset:{4*a*192+t*32}')
        w2reads()
        for k in range(4): e(f'v_mov_b32 v{ONE+k}, 0x3f803f80')
        e(f'''v_lshrrev_b32 v11, 1, v1
              v_mul_u32_u24 v11, 1152, v11
              v_and_b32 v12, 1, v1
              v_cmp_ne_u32 s[{sT2}:{sT3}], 0, v12
              v_lshl_add_u32 v12, v2, 1, v12
              v_lshl_add_u32 v11, v12, 4, v11
              s_mul_i32 s{sT1}, s{sW}, 384
              s_add_u32 s{sT1}, s{sT1}, {H56}
              s_lshl_b32 s{sT0}, s{sW}, 8
              s_add_u32 s{sT0}, s{sT0}, {L_EX}
              v_lshl_add_u32 v12, v0, 2, s{sT0}
              v_mov_b32 v15, -1
              s_waitcnt lgkmcnt(0)''')
        for b in range(3):
            for s in range(2):
                for t in range(2):
                    e(f'v_mfma_f32_16x16x32_bf16 {vr(D+4*t)}, {vr(ONE)}, {vr(B1+16*b+8*s+4*t)}, {vr(D+4*t) if (b or s) else 0}')
        e(f'''v_cmp_gt_u32 vcc, 16, v0
              s_nop 6
              v_cndmask_b32 v13, v{D+4}, v{D}, vcc
              ds_write_b32 v12, v13 offset:{L_CS-L_EX}
              s_waitcnt lgkmcnt(0)
              s_barrier''')
        def csread():
            e(f'''ds_read2st64_b32 v[{A}:{A+1}], v7 offset0:{(L_CS-L_EX)//256} offset1:{(L_CS-L_EX)//256+1}
                  ds_read_b32 v14, v7 offset:{L_CS-L_EX+512}
                  s_waitcnt lgkmcnt(0)
                  v_add_f32 v14, v14, v{A}
                  v_add_f32 v14, v14, v{A+1}''')
        csread()
        self.stamp(11)
        self.spin_init()
        top = self.lab('L_poll')
        e(f'{top}:')
        for b in range(3):
            e(f'buffer_load_dwordx4 {vr(Lr+4*b)}, v11, {srd(sWS)}, s{sT1} offen offset:{128*b} sc1')
        e(f'''s_waitcnt vmcnt(0)
              v_max3_u32 v13, v{Lr}, v{Lr+1}, v{Lr+2}''')
        for k in range(3, 11, 2):
            e(f'v_max3_u32 v13, v13, v{Lr+k}, v{Lr+k+1}')
        e(f'''v_max_u32 v13, v13, v{Lr+11}
              v_cmp_eq_u32 vcc, v15, v13''')
        self.spin_back(top, self.c.sl_h56)
        self.stamp(12)
        for b in range(3):
            e(f'v_mfma_f32_16x16x32_bf16 {vr(GR)}, {vr(Lr+4*b)}, {vr(Lr+4*b)}, {vr(GR) if b else 0}')
        for b in range(3):
            e(f'v_mfma_f32_16x16x32_bf16 {vr(RS)}, {vr(Lr+4*b)}, {vr(ONE)}, {vr(RS) if b else 0}')
        fill = [None]*12
        fill[4] = f'v_add_f32 v{GR}, v{GR}, v{GR+2}\nv_add_f32 v{GR+1}, v{GR+1}, v{GR+3}'
        fill[5] = f'v_cndmask_b32 v{GR}, v{GR}, v{GR+1}, s[{sT2}:{sT3}]\nv_add_f32 v{RS}, v{RS}, v{RS+1}'
        fill[6] = f'v_add_f32_dpp v{GR}, v{GR}, v{GR} row_ror:1 row_mask:0xf bank_mask:0xf\nv_add_f32 v{RS+2}, v{RS+2}, v{RS+3}'
        fill[7] = f'v_add_f32_dpp v{GR}, v{GR}, v{GR} row_ror:2 row_mask:0xf bank_mask:0xf\nv_add_f32 v{RS}, v{RS}, v{RS+2}'
        fill[8] = f'v_add_f32_dpp v{GR}, v{GR}, v{GR} row_ror:4 row_mask:0xf bank_mask:0xf'
        fill[10] = f'v_add_f32_dpp v{GR}, v{GR}, v{GR} row_ror:8 row_mask:0xf bank_mask:0xf'
        k = 0
        for t in range(2):
            for s in range(2):
                for b in range(3):
                    d = D + 8*t + 4*s
                    e(f'v_mfma_f32_16x16x32_bf16 {vr(d)}, {vr(Lr+4*b)}, {vr(B1+16*b+8*s+4*t)}, {vr(d) if b else 0}')
                    if fill[k]: e(fill[k])
                    k += 1
        e(f'''v_add_f32 v{D}, v{D}, v{D+2}
              v_add_f32 v{D+5}, v{D+5}, v{D+7}
              v_add_f32 v{D}, v{D}, v{D+5}
              s_nop 1
              v_add_f32 v{D+8}, v{D+8}, v{D+10}
              s_nop 1
              v_add_f32 v{D+13}, v{D+13}, v{D+15}
              v_add_f32 v{D+8}, v{D+8}, v{D+13}''')
        self.swap_reduce(D, D+8, RS, GR)
        e(f'''ds_write_b32 v12, v{D}
              s_waitcnt lgkmcnt(0)
              s_branch L_S4_p2''')
        e('''L_S4_hi:
             s_waitcnt vmcnt(0)''')
        w2reads()
        e('''s_waitcnt lgkmcnt(0)
             s_barrier''')
        csread()
        e('L_S4_p2:')
        e(f'''s_barrier
              ds_read2_b32 v[{A}:{A+1}], v8 offset0:32 offset1:48
              ds_read2_b32 v[{A+2}:{A+3}], v8 offset0:96 offset1:112
              ds_read2_b32 v[{A+4}:{A+5}], v8 offset0:160 offset1:176
              ds_read2st64_b32 v[{A+6}:{A+7}], v7 offset0:0 offset1:1
              ds_read_b32 v{A+8}, v7 offset:512''')
        self.stamp(13)
        e(f'''v_mov_b32 v{A+10}, {hex(f2u(1/576))}
              v_mov_b32 v{A+11}, {hex(f2u(1/576))}
              v_mov_b32 v{A+15}, s{sTAG}
              s_waitcnt lgkmcnt(2)
              v_pk_add_f32 v[{A}:{A+1}], v[{A}:{A+1}], v[{A+2}:{A+3}]
              v_pk_add_f32 v[{A}:{A+1}], v[{A}:{A+1}], v[{A+4}:{A+5}]
              v_pk_mul_f32 v[{A}:{A+1}], v[{A}:{A+1}], v[{A+10}:{A+11}]
              v_fma_f32 v{A+1}, -v{A}, v{A}, v{A+1}
              v_add_f32 v{A+1}, {hex(f2u(1e-5))}, v{A+1}
              v_rsq_f32 v{A+1}, v{A+1}
              s_waitcnt lgkmcnt(0)
              v_add_f32 v{A+6}, v{A+6}, v{A+7}
              v_fma_f32 v{A+8}, -v{A}, v14, v{A+8}
              v_add_f32 v{A+6}, v{A+6}, v{A+8}
              v_mul_f32 v{A+6}, v{A+6}, v{A+1}
              v_mul_f32 v{A+7}, {hex(f2u(-math.log2(math.e)))}, v{A+6}
              v_exp_f32 v{A+7}, v{A+7}
              s_nop 0
              v_add_f32 v{A+7}, 1.0, v{A+7}
              v_rcp_f32 v{A+7}, v{A+7}
              s_nop 0
              v_mul_f32 v{A+6}, v{A+6}, v{A+7}
              s_nop 1
              v_mov_b32_dpp v{A+7}, v{A+6} quad_perm:[1,1,3,3] row_mask:0xf bank_mask:0xf
              v_cvt_pk_bf16_f32 v{A+6}, v{A+6}, v{A+7}
              s_nop 1''')
        for rho in range(4):
            e(f'v_mov_b32_dpp v{A+rho}, v{A+6} row_newbcast:{2*rho} row_mask:0xf bank_mask:0xf')
        e('s_nop 1')
        O = 144
        for t in range(6):
            e(f'v_mfma_f32_16x16x32_bf16 {vr(O+4*t)}, {vr(A)}, {vr(B2+4*t)}, 0')
        e(f'''s_nop 3
              v_cvt_pk_bf16_f32 v{A+12}, v{O}, v{O+4}
              s_nop 0
              v_cvt_pk_bf16_f32 v{A+13}, v{O+8}, v{O+12}
              s_nop 0
              v_cvt_pk_bf16_f32 v{A+14}, v{O+16}, v{O+20}
              buffer_store_dwordx4 {vr(A+12)}, v9, {srd(sWS)}, s{sT4} offen sc1''')
        self.stamp(14)
        self.end()

    def fin(self):
        e = self.e
        G, HF, A, D = 16, 56, 64, 68
        e('''L_FIN:
             s_barrier''')
        self.clear_check(4, G)
        e(f'''s_mul_i32 s{sT0}, s{sXC}, 3
              s_add_u32 s{sT0}, s{sT0}, s{sY}
              s_sub_u32 s{sU}, s{sT0}, 11
              s_lshr_b32 s{sT0}, s{sU}, 2
              s_and_b32 s{sT1}, s{sU}, 3
              s_mul_i32 s{sT2}, s{sT0}, 192
              s_lshl_b32 s{sT3}, s{sT1}, 3
              s_add_u32 s{sT2}, s{sT2}, s{sT3}
              s_add_u32 s{sT3}, s{sT2}, {H56}
              s_lshl_b32 s{sT4}, s{sU}, 6
              s_add_u32 s{sT4}, s{sT4}, {H7}
              v_lshrrev_b32 v4, 2, v1
              v_and_b32 v5, 3, v1
              v_lshl_add_u32 v6, v4, 2, v2
              v_mul_u32_u24 v7, 1152, v6
              v_lshl_add_u32 v7, v5, 1, v7
              v_mov_b32 v8, {OOB}
              v_cmp_gt_u32 vcc, 2, v4
              v_mul_u32_u24 v9, 1536, v6
              v_lshl_add_u32 v9, v5, 4, v9
              v_cndmask_b32 v7, v8, v7, vcc
              v_lshlrev_b32 v10, 7, v2
              v_lshl_add_u32 v10, v5, 1, v10
              v_cmp_eq_u32 vcc, 0, v4
              v_and_b32 v12, 1, v1
              v_lshlrev_b32 v12, 4, v12
              v_cndmask_b32 v10, v8, v10, vcc
              v_cmp_gt_u32 vcc, 2, v2
              v_mov_b32 v13, 0x3f80
              v_lshlrev_b32 v13, v12, v13
              v_cndmask_b32 v10, v8, v10, vcc
              v_cmp_eq_u32 vcc, 0, v2
              v_lshrrev_b32 v12, 1, v1
              v_mov_b32 v{A+3}, 0
              v_cndmask_b32 v11, v8, v10, vcc''')
        for rho in range(3):
            e(f'''v_cmp_eq_u32 vcc, {rho}, v12
                  s_nop 1
                  v_cndmask_b32 v{A+rho}, 0, v13, vcc''')
        e(f'''v_mov_b32 v14, 0xffff
              v_mov_b32 v15, s{sTAG}''')
        self.spin_init()
        top = self.lab('L_poll')
        e(f'{top}:')
        for t in range(6):
            e(f'buffer_load_ushort v{G+t}, v7, {srd(sWS)}, s{sT3} offen offset:{32*t} sc1')
        e(f'''s_waitcnt vmcnt(0)
              v_max3_u32 v12, v{G}, v{G+1}, v{G+2}
              v_max3_u32 v12, v12, v{G+3}, v{G+4}
              v_max_u32 v12, v12, v{G+5}
              v_cmp_eq_u32 vcc, v14, v12''')
        self.spin_back(top, 2)
        self.stamp(12)
        for k in range(3):
            e(f'v_lshl_or_b32 v{HF+k}, v{G+2*k+1}, 16, v{G+2*k}')
        e(f'v_mov_b32 v{HF+3}, 0')
        for i in range(1, 9):
            e(f'v_add_u32 v{72+i}, {i*16*1536}, v9')
        self.spin_init()
        top = self.lab('L_poll')
        e(f'{top}:')
        for i in range(9):
            e(f'buffer_load_dwordx4 {vr(G+4*i)}, v{72+i if i else 9}, {srd(sWS)}, s{sT4} offen sc1')
        e(f'v_mfma_f32_16x16x32_bf16 {vr(D)}, {vr(A)}, {vr(HF)}, 0')
        for i in range(9):
            e(f's_waitcnt vmcnt({8-i})')
            e(f'v_mfma_f32_16x16x32_bf16 {vr(D)}, {vr(A)}, {vr(G+4*i)}, {vr(D)}')
            if i == 0: e(f'v_xor_b32 v12, v15, v{G+3}')
            else: e(f'v_bitop3_b32 v12, v12, v{G+4*i+3}, v15 bitop3:0xf6')
        e('v_cmp_ne_u32 vcc, 0, v12')
        self.spin_back(top, self.c.sl_h7)
        self.stamp(13)
        e('s_nop 4')
        for k in (4, 8):
            for r in range(4):
                e(f'v_add_f32_dpp v{D+r}, v{D+r}, v{D+r} row_ror:{k} row_mask:0xf bank_mask:0xf')
        e(f'''v_cvt_pk_bf16_f32 v12, v{D}, v{D+1}
              v_cvt_pk_bf16_f32 v13, v{D+2}, v{D+3}
              buffer_store_short v12, v10, {srd(sOUT)}, s{sT2} offen
              buffer_store_short_d16_hi v12, v10, {srd(sOUT)}, s{sT2} offen offset:32
              buffer_store_short v13, v11, {srd(sOUT)}, s{sT2} offen offset:64
              buffer_store_short_d16_hi v13, v11, {srd(sOUT)}, s{sT2} offen offset:96''')
        self.stamp(14)
        e(f'''s_cmp_lg_u32 s{sU}, 0
              s_cbranch_scc1 L_end
              v_cmp_eq_u32 vcc, 0, v0
              v_mov_b32 v4, 0
              s_nop 0
              v_cndmask_b32 v4, v8, v4, vcc
              buffer_store_dword v15, v4, {srd(sWS)}, 0 offen''')
        self.end()

    def x_path(self):
        e = self.e
        e(f'''L_X:
              s_sub_u32 s{sY}, s{sY}, 16
              s_lshr_b32 s{sH}, s{sY}, 1
              s_lshl_b32 s{sT0}, s{sXC}, 3
              s_add_u32 s{sH}, s{sH}, s{sT0}
              s_and_b32 s{sJ}, s{sY}, 1
              s_cmp_ge_u32 s{sW}, 4
              s_cbranch_scc1 L_PV''')
        K, Q, D = 128, 64, 16
        e(f'''v_lshlrev_b32 v4, 4, v0
              s_lshl_b32 s{sT0}, s{sH}, 17
              s_lshl_b32 s{sT1}, s{sW}, 15
              s_add_u32 s{sT0}, s{sT0}, s{sT1}
              s_mul_i32 s{sT1}, s{sW}, {32*1040}
              s_mov_b32 m0, s{sT1}''')
        if self.c.x_tagfirst: self.get_tag()
        if self.c.x_sleep: e(f's_sleep {self.c.x_sleep}')
        if self.c.stagger:
            e(f'''s_lshl_b32 s{sT2}, s{sJ}, 14
                  s_add_u32 s{sT3}, s{sT0}, s{sT2}''')
            self.dma_loop(16, 4, sCKV, sT3, 1024, 1040)
            e(f'''s_xor_b32 s{sT2}, s{sT2}, 16384
                  s_add_u32 s{sT3}, s{sT0}, s{sT2}''')
            self.dma_loop(16, 4, sCKV, sT3, 1024, 1040)
        else:
            self.dma_loop(32, 4, sCKV, sT0, 1024, 1040)
        self.stamp(1)
        e(f'''v_and_b32 v5, 7, v1
              v_lshrrev_b32 v6, 3, v1
              v_lshl_add_u32 v5, v5, 1, v6
              v_mul_u32_u24 v5, 1040, v5
              v_lshl_add_u32 v5, v2, 8, v5
              v_add_u32 v5, s{sT1}, v5
              v_mul_u32_u24 v6, 1040, v1
              v_lshl_add_u32 v6, v2, 8, v6
              v_add_u32 v6, {L_QA}, v6
              v_lshlrev_b32 v7, 2, v1
              v_add_u32 v7, {L_MX}, v7
              s_lshl_b32 s{sT2}, s{sW}, 10
              s_add_u32 s{sT2}, s{sT2}, {L_PB}
              v_add_u32 v8, s{sT2}, v4
              v_mov_b32 v9, 0xff800000
              v_mul_u32_u24 v3, 80, v1
              v_add_u32 v3, {L_LS}, v3
              s_lshl_b32 s{sT2}, s{sW}, 4
              v_lshl_add_u32 v10, v2, 2, s{sT2}
              v_add_u32 v10, v10, v3
              v_mov_b32 v11, {OOB}
              v_cmp_gt_u32 vcc, 16, v0
              s_mul_i32 s{sT2}, s{sH}, {STS}
              s_lshl_b32 s{sT3}, s{sJ}, 8
              s_add_u32 s{sT2}, s{sT2}, s{sT3}
              s_add_u32 s{sT2}, s{sT2}, {ST}
              v_cndmask_b32 v11, v11, v4, vcc''')
        if not self.c.x_tagfirst: self.get_tag()
        e(f'''v_mov_b32 v14, s{sTAG}
              v_mov_b32 v15, s{sTAG}
              ds_write_b32 v7, v9''')
        n = self.c.x_n
        assert n <= 16
        e('s_waitcnt vmcnt(16)')
        for s in range(16): e(f'ds_read_b128 {vr(K+4*s)}, v5 offset:{16*s}')
        e(f'''s_waitcnt vmcnt({n})
              s_barrier''')
        self.stamp(2)
        e('s_waitcnt vmcnt(0)')
        self.stamp(3)
        for s in range(16): e(f'ds_read_b128 {vr(K+64+4*s)}, v5 offset:{16640+16*s}')
        e('''s_waitcnt lgkmcnt(0)
             s_barrier''')
        self.stamp(4)
        PRE = 12
        for s in range(PRE): e(f'ds_read_b128 {vr(Q+4*s)}, v6 offset:{16*s}')
        for s in range(16):
            issued = min(16, PRE + s)
            e(f's_waitcnt lgkmcnt({issued-1-s})')
            for t in range(2):
                e(f'v_mfma_f32_16x16x32_bf16 {vr(D+4*t)}, {vr(K+64*t+4*s)}, {vr(Q+4*s)}, {vr(D+4*t) if s else 0}')
            if PRE + s < 16: e(f'ds_read_b128 {vr(Q+4*(PRE+s))}, v6 offset:{16*(PRE+s)}')
        e(f'''s_nop 6
              v_max3_f32 v9, v{D}, v{D+1}, v{D+2}
              v_max3_f32 v9, v9, v{D+3}, v{D+4}
              v_max3_f32 v9, v9, v{D+5}, v{D+6}
              v_max_f32 v9, v9, v{D+7}
              ds_max_f32 v7, v9
              s_waitcnt lgkmcnt(0)
              s_barrier
              ds_read_b32 v12, v7''')
        self.stamp(5)
        e('s_waitcnt lgkmcnt(0)')
        for k in range(8): e(f'v_sub_f32 v{D+k}, v{D+k}, v12')
        for k in range(8): e(f'v_exp_f32 v{D+k}, v{D+k}')
        for k in range(4): e(f'v_cvt_pk_bf16_f32 v{D+8+k}, v{D+2*k}, v{D+2*k+1}')
        e(f'''ds_write_b128 v8, {vr(D+8)}
              v_pk_add_f32 {vr(D,2)}, {vr(D,2)}, {vr(D+2,2)}
              v_pk_add_f32 {vr(D+4,2)}, {vr(D+4,2)}, {vr(D+6,2)}
              v_pk_add_f32 {vr(D,2)}, {vr(D,2)}, {vr(D+4,2)}
              v_add_f32 v{D}, v{D}, v{D+1}
              ds_write_b32 v10, v{D}
              s_waitcnt lgkmcnt(0)
              s_barrier''')
        self.stamp(6)
        sk = self.lab('L_nostat')
        e(f'''s_cmp_lg_u32 s{sW}, 0
              s_cbranch_scc1 {sk}''')
        for s in range(4): e(f'ds_read_b128 {vr(D+4*s)}, v3 offset:{16*s}')
        e(f'''s_waitcnt lgkmcnt(2)
              v_pk_add_f32 {vr(D,2)}, {vr(D,2)}, {vr(D+2,2)}
              v_pk_add_f32 {vr(D+4,2)}, {vr(D+4,2)}, {vr(D+6,2)}
              v_pk_add_f32 {vr(D,2)}, {vr(D,2)}, {vr(D+4,2)}
              s_waitcnt lgkmcnt(0)
              v_pk_add_f32 {vr(D+8,2)}, {vr(D+8,2)}, {vr(D+10,2)}
              v_pk_add_f32 {vr(D+12,2)}, {vr(D+12,2)}, {vr(D+14,2)}
              v_pk_add_f32 {vr(D,2)}, {vr(D,2)}, {vr(D+8,2)}
              v_pk_add_f32 {vr(D,2)}, {vr(D,2)}, {vr(D+12,2)}
              v_add_f32 v13, v{D}, v{D+1}''')
        e(f'buffer_store_dwordx4 v[12:15], v11, {srd(sWS)}, s{sT2} offen sc1')
        self.stamp(7)
        e(f'{sk}:')
        e('s_branch L_X_D')
        V, G, P, DD = 128, 16, 48, 64
        e(f'''L_PV:
              s_sub_u32 s{sT4}, s{sW}, 4
              v_lshlrev_b32 v4, 18, v2
              v_lshl_add_u32 v4, v1, 4, v4
              s_lshl_b32 s{sT0}, s{sJ}, 20
              s_lshl_b32 s{sT1}, s{sT4}, 14
              s_add_u32 s{sT0}, s{sT0}, s{sT1}
              s_lshl_b32 s{sT1}, s{sH}, 8
              s_add_u32 s{sT0}, s{sT0}, s{sT1}
              s_add_u32 s{sT0}, s{sT0}, {PAY}
              s_add_u32 s{sT1}, s{sT0}, 65536
              s_add_u32 s{sT2}, s{sT0}, {2*65536}
              s_add_u32 s{sT3}, s{sT0}, {3*65536}''')
        for k in range(4): e(f'v_mov_b32 v{G+k}, -1')
        for r in range(4): e(f'buffer_store_dwordx4 {vr(G)}, v4, {srd(sWS)}, s{sT0+r} offen sc1')
        e(f'''v_and_b32 v5, 1, v2
              v_lshlrev_b32 v5, 3, v5
              v_lshrrev_b32 v6, 2, v1
              v_lshl_add_u32 v5, v6, 1, v5
              v_lshrrev_b32 v6, 1, v2
              v_add_u32 v5, v5, v6
              v_mul_u32_u24 v5, 1040, v5
              v_and_b32 v6, 3, v1
              v_lshl_add_u32 v5, v6, 3, v5
              s_lshl_b32 s{sT5}, s{sT4}, 8
              v_add_u32 v5, s{sT5}, v5
              v_add_u32 v6, {64*1040}, v5
              v_lshlrev_b32 v7, 4, v0
              v_add_u32 v12, 4096, v7
              v_add_u32 v13, {L_PB}, v7
              s_mul_i32 s{sT5}, s{sT4}, {4*1040}
              s_add_u32 s{sT5}, s{sT5}, {L_QA}
              v_lshl_add_u32 v8, v0, 3, s{sT5}
              v_add_u32 v9, 1040, v8
              v_add_u32 v10, 2080, v8
              v_add_u32 v11, 3120, v8
              s_lshl_b32 s{sT5}, s{sJ}, 15
              s_lshl_b32 s{sU}, s{sT4}, 13
              s_add_u32 s{sT5}, s{sT5}, s{sU}
              s_add_u32 s{sT5}, s{sT5}, {H2}''')
        self.get_tag()
        e(f'v_mov_b32 v15, s{sTAG}')
        self.spin_init()
        def loads():
            for i in range(8):
                e(f'buffer_load_dwordx4 {vr(G+4*i)}, v{7 if i < 4 else 12}, {srd(sWS)}, s{sT5} offen offset:{1024*(i&3)} sc1')
        def trreads(a):
            for s in range(4):
                for T in range(8):
                    e(f'ds_read_b64_tr_b16 {vr(V+16*T+4*s+2*a,2)}, v{5 if s < 2 else 6} offset:{(32*(s&1)+16*a)*1040+32*T}')
        e('s_barrier')
        loads()
        self.stamp(2)
        trreads(0)
        chk = self.lab('L_chk'); top = self.lab('L_poll')
        e(f's_branch {chk}\n{top}:')
        loads()
        e(f'{chk}:')
        for i in range(8):
            e(f's_waitcnt vmcnt({7-i})')
            e(f'v_bitop3_b32 v{P+i}, v{G+4*i+1}, v{G+4*i+3}, v15 bitop3:0x7e')
            e(f'ds_write2_b32 v{8+(i>>1)}, v{G+4*i}, v{G+4*i+2} offset0:{128*(i&1)} offset1:{128*(i&1)+1}')
        e(f'''v_or3_b32 v{P}, v{P}, v{P+1}, v{P+2}
              v_or3_b32 v{P+3}, v{P+3}, v{P+4}, v{P+5}
              v_or3_b32 v{P}, v{P}, v{P+6}, v{P+7}
              v_or_b32 v{P}, v{P}, v{P+3}
              v_cmp_ne_u32 vcc, 0, v{P}
              s_waitcnt lgkmcnt(0)''')
        self.spin_back(top, self.c.sl_h2)
        self.stamp(3)
        e('s_barrier')
        self.stamp(4)
        trreads(1)
        e('''s_barrier
             s_waitcnt lgkmcnt(0)
             s_barrier''')
        for s in range(4): e(f'ds_read_b128 {vr(P+4*s)}, v13 offset:{1024*s}')
        self.stamp(6)
        def cvt(Tp):
            for r in range(4):
                e(f'v_cvt_pk_bf16_f32 v{G+4*r+Tp}, v{DD+8*Tp+r}, v{DD+8*Tp+4+r}')
        for Tp in range(4):
            for s in range(4):
                if Tp == 0: e(f's_waitcnt lgkmcnt({3-s})')
                for T in (2*Tp, 2*Tp+1):
                    e(f'v_mfma_f32_16x16x32_bf16 {vr(DD+4*T)}, {vr(P+4*s)}, {vr(V+16*T+4*s)}, {vr(DD+4*T) if s else 0}')
            if Tp: cvt(Tp-1)
        e('s_nop 3')
        for r in range(4):
            e(f'''v_cvt_pk_bf16_f32 v{G+4*r+3}, v{DD+24+r}, v{DD+28+r}
                  buffer_store_dwordx4 {vr(G+4*r)}, v4, {srd(sWS)}, s{sT0+r} offen sc1''')
        self.stamp(7)
        e(f'''L_X_D:
              s_barrier
              s_cmp_ge_u32 s{sW}, 6
              s_cbranch_scc1 L_end
              s_mov_b32 s{sU}, s{sY}''')
        self.stamp(8)
        self.s4_issue()

    def dump(self):
        e = self.e
        e(f'''L_dump:
              s_memrealtime s[{sST+30}:{sST+31}]
              s_waitcnt lgkmcnt(0)
              {f's_mov_b32 s{sST+2}, s92' if self.c.bwtest else ''}
              s_lshl_b32 s{sT0}, s2, 3
              s_add_u32 s{sT0}, s{sT0}, s{sW}
              s_lshl_b32 s{sT0}, s{sT0}, 6
              s_add_u32 s{sT0}, s{sT0}, {DBG}
              v_mov_b32 v4, 0
              s_mov_b64 exec, 1''')
        for i in range(16):
            e(f'''v_mov_b32 v5, s{sST+2*i}
                  buffer_store_dword v5, v4, {srd(sWS)}, s{sT0} offen offset:{4*i}''')
        if self.c.hold:
            c = self.c
            e(f'''s_sub_u32 s{sT0}, s{sST+2*c.hi}, s{sST}
                  s_cmp_eq_u32 s{sST+2*c.hi}, 0
                  s_cselect_b32 s{sT0}, 0, s{sT0}
                  s_lshr_b32 s{sT1}, s2, 3
                  s_cmp_lt_u32 s{sT1}, {c.hy0}
                  s_cbranch_scc1 L_exit
                  s_cmp_ge_u32 s{sT1}, {c.hy1}
                  s_cbranch_scc1 L_exit
                  s_cmp_lt_u32 s{sW}, {c.hw0}
                  s_cbranch_scc1 L_exit
                  s_cmp_ge_u32 s{sW}, {c.hw1}
                  s_cbranch_scc1 L_exit
                  s_cmp_lg_u32 s{sXC}, {c.hx if c.hx >= 0 else f's{sXC}'}
                  s_cbranch_scc1 L_exit
                  s_min_u32 s{sT0}, s{sT0}, 10000
                  s_mul_i32 s{sT0}, s{sT0}, {c.hk}
                  s_add_u32 s{sT0}, s{sT0}, {c.hold}
                  L_hold:
                  s_sleep 4
                  s_memrealtime s[{sT2}:{sT3}]
                  s_waitcnt lgkmcnt(0)
                  s_sub_u32 s{sT2}, s{sT2}, s{sST}
                  s_cmp_lt_u32 s{sT2}, s{sT0}
                  s_cbranch_scc1 L_hold''')
        e('s_endpgm')

    def build(self):
        e = self.e
        if self.c.stamps:
            for i in range(1, 16): e(f's_mov_b32 s{sST+2*i}, 0')
        self.prologue()
        self.s1a()
        self.y_rest()
        self.s1b()
        self.s3a()
        self.s3b()
        self.fin()
        self.x_path()
        self.s4()
        if self.c.stamps: self.dump()
        e('''L_exit:
             s_endpgm
             L_codeend:''')
        body = self.L
        nh = hazard.check(body)
        hdr = open('cdna_kernels/' + KN[:-7] + '.s.ref').read().split('; Override')[0]
        out = hdr + f'''; Single persistent launch, one workgroup per CU; generated by a script of my own (stage map in the labels).
; @launch grid=(256,1,1) block=(512,1,1) lds={LDS_SIZE}
.amdgcn_target "amdgcn-amd-amdhsa--gfx950"
.text
.globl {KN}
.p2align 8
.type {KN},@function
{KN}:
''' + '\n'.join(body) + f'''
.section .rodata,"a"
.p2align 6
.amdhsa_kernel {KN}
  .amdhsa_next_free_vgpr 256
  .amdhsa_next_free_sgpr {96 if self.c.stamps else 64}
  .amdhsa_accum_offset 256
  .amdhsa_group_segment_fixed_size 0
  .amdhsa_kernarg_size 96
  .amdhsa_user_sgpr_count 2
  .amdhsa_user_sgpr_kernarg_segment_ptr 1
  .amdhsa_system_sgpr_workgroup_id_x 1
.end_amdhsa_kernel
'''
        return out, nh

if __name__ == '__main__':
    cfg = Cfg()
    out = sys.argv[1]
    for a in sys.argv[2:]:
        k, v = a.split('=')
        setattr(cfg, k, type(getattr(Cfg, k))(int(v, 0)))
    s, nh = Gen(cfg).build()
    open(out, 'w').write(s)
    print('written', out, 'hazards', nh)
```

```python
import sys, struct, math
import hazard

KN = 'sequential_preLN__compressed_kv_cla__dense_activation_silu__decode_kernel'

class Cfg:
    stamps = False
    nt = True
    x_n = 16
    s1b_n = 4
    stagger = True
    prefetch_code = True
    spin = 0x10000
    sl_h1 = 0
    sl_h2 = 2
    sl_st = 2
    sl_pay = 0
    sl_h4 = 0
    sl_h56 = 1
    sl_h7 = 0
    x_tagfirst = 1
    x_sleep = 0
    hold = 0
    hk = 0
    hi = 15
    hy0 = 0
    hy1 = 32
    hw0 = 0
    hw1 = 8
    hx = -1
    bwtest = 0

H1 = 0x1000; H2 = 0x21000; ST = 0x90000; H4 = 0x39000; H56 = 0x49000; H7 = 0x4C000
STS = 640
PAY = 0x100000; DBG = 0x300000; WS_SIZE = 0x340000
OOB = 0x7ff00000
L_CKV = 0; L_QA = 133120; L_PB = 149760
L_WO = 0; L_W1 = 0; L_W2 = 38016; L_WUK = 77824; L_WUV = 110592
L_MX = 153856; L_CB = 153984; L_EX = 155264; L_CS = 156288; L_LS = 157312; L_ML = 158592
LDS_SIZE = 158720

sX, sCKV, sWQ, sWUK, sWUV, sWO, sW1, sW2, sOUT, sWS = 4, 8, 12, 16, 20, 24, 28, 32, 36, 40
sTAG, sW, sXC, sY, sH, sJ = 44, 45, 46, 47, 48, 49
sT0, sT1, sT2, sT3, sT4, sT5 = 50, 51, 52, 53, 54, 55
sU, sCNT, sSPIN = 56, 57, 58
sST = 60

def f2u(x): return struct.unpack('<I', struct.pack('<f', x))[0]
def srd(b): return f's[{b}:{b+3}]'
def vr(b, n=4): return f'v[{b}:{b+n-1}]' if n > 1 else f'v{b}'

class Gen:
    def __init__(self, cfg):
        self.c = cfg; self.L = []; self.nlab = 0; self.stampnames = {}
    def e(self, s):
        for ln in s.strip('\n').split('\n'):
            ln = ln.strip()
            if ln: self.L.append(('' if ln.endswith(':') else '    ') + ln)
    def lab(self, p='L'):
        self.nlab += 1; return f'{p}_{self.nlab}'
    def stamp(self, i, name=None):
        if self.c.stamps:
            self.e(f's_memrealtime s[{sST+2*i}:{sST+2*i+1}]')
    def end(self):
        if self.c.stamps: self.e('s_branch L_dump')
        else: self.e('s_endpgm')
    @property
    def NT(self): return ' nt' if self.c.nt else ''
    def spin_init(self): self.e(f's_mov_b32 s{sSPIN}, {self.c.spin}')
    def spin_back(self, top, sleep=0):
        done = self.lab('L_ok')
        self.e(f'''s_cbranch_vccz {done}
                   {f's_sleep {sleep}' if sleep else ''}
                   s_sub_u32 s{sSPIN}, s{sSPIN}, 1
                   s_cbranch_scc0 {top}
                   {done}:''')
    def dma_loop(self, n, vaddr, srdb, sOff, dOff, dM0):
        top = self.lab('L_dma')
        self.e(f'''s_mov_b32 s{sCNT}, {n-1}
                   {top}:
                   buffer_load_dwordx4 v{vaddr}, {srd(srdb)}, s{sOff} offen{self.NT} lds
                   s_add_u32 m0, m0, {dM0}
                   s_add_u32 s{sOff}, s{sOff}, {dOff}
                   s_sub_u32 s{sCNT}, s{sCNT}, 1
                   s_cbranch_scc0 {top}''')
    def swap_reduce(self, v0, v1, v2, v3):
        self.e(f'''s_nop 1
                   v_permlane32_swap_b32 v{v0}, v{v2}
                   v_permlane32_swap_b32 v{v1}, v{v3}
                   v_add_f32 v{v0}, v{v0}, v{v2}
                   v_add_f32 v{v1}, v{v1}, v{v3}
                   s_nop 1
                   v_permlane16_swap_b32 v{v0}, v{v1}
                   v_add_f32 v{v0}, v{v0}, v{v1}''')
    def allreduce(self, op, v, t, ks=(1, 2, 4, 8)):
        for k in ks:
            self.e(f'''s_nop 1
                       {op}_dpp v{v}, v{v}, v{v} row_ror:{k} row_mask:0xf bank_mask:0xf''')
        for sw in ('16', '32'):
            self.e(f'''v_mov_b32 v{t}, v{v}
                       s_nop 1
                       v_permlane{sw}_swap_b32 v{v}, v{t}
                       {op} v{v}, v{v}, v{t}''')

    def prologue(self):
        e = self.e
        e(f'''s_cmp_ge_u32 s2, 256
              s_cbranch_scc1 L_exit''')
        self.stamp(0)
        for b, off in ((sX, 0), (sWQ, 16), (sCKV, 8), (sWUK, 24), (sWS, 88), (sWUV, 32), (sWO, 40)):
            e(f's_load_dwordx2 s[{b}:{b+1}], s[0:1], {off}')
        e('''v_lshrrev_b32 v1, 6, v0
             v_and_b32 v0, 63, v0''')
        e(f'v_readfirstlane_b32 s{sW}, v1')
        e('''v_and_b32 v1, 15, v0
             v_lshrrev_b32 v2, 4, v0''')
        for b, sz in ((sX, 1152), (sCKV, 8192*1024), (sWQ, 576*8192), (sWUK, 512*8192), (sWUV, 512*8192),
                      (sWO, 4096*1152), (sW1, 576*9216), (sW2, 4608*1152), (sOUT, 1152), (sWS, WS_SIZE)):
            e(f'''s_mov_b32 s{b+2}, {sz}
                  s_mov_b32 s{b+3}, 0x20000''')
        e(f'''s_and_b32 s{sXC}, s2, 7
              s_lshr_b32 s{sY}, s2, 3
              s_lshr_b32 s{sH}, s{sY}, 2
              s_lshl_b32 s{sT0}, s{sXC}, 2
              s_add_u32 s{sH}, s{sH}, s{sT0}
              s_and_b32 s{sJ}, s{sY}, 3
              s_waitcnt lgkmcnt(0)''')
        for b, off in ((sW1, 56), (sW2, 64), (sOUT, 72)):
            e(f's_load_dwordx2 s[{b}:{b+1}], s[0:1], {off}')
        if self.c.bwtest:
            e(f'''s_waitcnt lgkmcnt(0)
                  s_lshl_b32 s{sT0}, s2, 3
                  s_add_u32 s{sT0}, s{sT0}, s{sW}
                  s_lshl_b32 s{sT0}, s{sT0}, 11
                  s_add_u32 s{sT1}, s{sT0}, {4<<20}
                  v_lshlrev_b32 v4, 4, v0''')
            k = 0
            for b, so in ((sWQ, sT0), (sWUK, sT0), (sCKV, sT0), (sCKV, sT1), (sWUV, sT0), (sWO, sT0), (sW1, sT0), (sW2, sT0)):
                for o in (0, 1024):
                    e(f'buffer_load_dwordx4 {vr(16+4*k)}, v4, {srd(b)}, s{so} offen offset:{o}' + (' nt' if self.c.bwtest == 1 else ''))
                    k += 1
            e(f'''s_waitcnt vmcnt(0)
                  s_memrealtime s[92:93]
                  s_sleep 127
                  s_sleep 127
                  s_sleep 127
                  s_sleep 127''')
        e(f'''s_load_dword s{sTAG}, s[{sWS}:{sWS+1}], 0
              s_cmp_ge_u32 s{sY}, 16
              s_cbranch_scc1 L_X
              s_cmp_lg_u32 s{sW}, 0
              s_cbranch_scc1 L_Y_not0''')
    def get_tag(self):
        self.e(f'''s_waitcnt lgkmcnt(0)
                   s_or_b32 s{sTAG}, s{sTAG}, 0x40004000
                   s_add_u32 s{sTAG}, s{sTAG}, 1
                   s_and_b32 s{sTAG}, s{sTAG}, 0xbfffbfff''')

    def s1a(self):
        e = self.e
        XS, X1, XR, SEL, A0, D, WQ = 8, 12, 16, 40, 48, 56, 112
        e(f'''v_lshlrev_b32 v5, 4, v0
              v_lshlrev_b32 v6, 2, v0
              s_mul_i32 s{sT0}, s{sJ}, 288
              v_mul_u32_u24 v4, 72, v2
              buffer_load_dwordx4 {vr(XS)}, v5, {srd(sX)}, 0 offen
              buffer_load_dword v{X1}, v6, {srd(sX)}, 0 offen offset:1024''')
        for k in range(4):
            e(f'buffer_load_dwordx4 {vr(XR+4*k)}, v4, {srd(sX)}, s{sT0} offen offset:{16*k}')
        e(f'buffer_load_dwordx2 {vr(XR+16,2)}, v4, {srd(sX)}, s{sT0} offen offset:64')
        e(f'''v_mul_u32_u24 v7, {36*8192}, v2
              v_lshl_add_u32 v7, v1, 4, v7
              s_mul_i32 s{sT1}, s{sJ}, {144*8192}
              s_lshl_b32 s{sT2}, s{sH}, 8
              s_add_u32 s{sT1}, s{sT1}, s{sT2}''')
        for t in range(36):
            e(f'buffer_load_dwordx4 {vr(WQ+4*t)}, v7, {srd(sWQ)}, s{sT1} offen{self.NT}')
            if t < 35: e(f's_addk_i32 s{sT1}, 8192')
        e('s_barrier')
        self.stamp(1)
        e(f'''v_and_b32 v34, 2, v1
              v_cmp_ne_u32 vcc, 0, v34
              v_mov_b32 v35, 0x0504
              v_mov_b32 v36, 0x0706
              v_mov_b32 v37, 0x0100
              v_cndmask_b32 v35, v35, v37, vcc
              v_cndmask_b32 v36, v36, v37, vcc
              v_and_b32 v34, 1, v1
              v_lshlrev_b32 v34, 4, v34
              v_xor_b32 v35, 0x0c0c, v35
              v_xor_b32 v36, 0x0c0c, v36
              v_lshlrev_b32 v35, v34, v35
              v_lshlrev_b32 v36, v34, v36
              v_xor_b32 v35, 0x0c0c0c0c, v35
              v_xor_b32 v36, 0x0c0c0c0c, v36
              v_mov_b32 v37, 0x0c0c0c0c
              v_lshrrev_b32 v34, 2, v1''')
        for rho in range(4):
            e(f'''v_cmp_eq_u32 vcc, {rho}, v34
                  s_nop 1
                  v_cndmask_b32 v{SEL+rho}, v37, v35, vcc
                  v_cndmask_b32 v{SEL+4+rho}, v37, v36, vcc''')
        e(f'''v_mov_b32 v38, 0x3f803f80
              v_mov_b32 v34, 0
              v_mov_b32 v35, 0''')
        e(f'''s_lshl_b32 s{sT2}, s{sH}, 12
              s_lshl_b32 s{sT3}, s{sJ}, 10
              s_add_u32 s{sT2}, s{sT2}, s{sT3}
              s_add_u32 s{sT2}, s{sT2}, {H1}''')
        e('s_waitcnt vmcnt(41)')
        for k in range(5):
            e(f'''v_dot2_f32_bf16 v34, v{XS+k}, v38, v34
                  v_dot2_f32_bf16 v35, v{XS+k}, v{XS+k}, v35''')
        e('s_nop 2')
        for k in (1, 2, 4, 8):
            e(f'''v_add_f32_dpp v34, v34, v34 row_ror:{k} row_mask:0xf bank_mask:0xf
                  v_add_f32_dpp v35, v35, v35 row_ror:{k} row_mask:0xf bank_mask:0xf
                  s_nop 0''')
        for sw in ('16', '32'):
            e(f'''v_mov_b32 v36, v34
                  v_mov_b32 v37, v35
                  s_nop 0
                  v_permlane{sw}_swap_b32 v34, v36
                  v_permlane{sw}_swap_b32 v35, v37
                  v_add_f32 v34, v34, v36
                  v_add_f32 v35, v35, v37''')
        cs = math.log2(math.e) / math.sqrt(128.0)
        e(f'''v_mul_f32 v34, {hex(f2u(1/576))}, v34
              v_mul_f32 v35, {hex(f2u(1/576))}, v35
              v_fma_f32 v35, -v34, v34, v35
              v_add_f32 v35, {hex(f2u(1e-5))}, v35
              v_rsq_f32 v35, v35
              s_waitcnt vmcnt(36)
              v_mul_f32 v35, {hex(f2u(cs))}, v35''')
        def perm(t):
            for rho in range(4):
                e(f'v_perm_b32 v{A0+4*(t&1)+rho}, v{XR+(t>>1)}, v38, v{SEL+4*(t&1)+rho}')
        perm(0)
        for t in range(36):
            if t < 35: perm(t+1)
            else: self.get_tag()
            e(f's_waitcnt vmcnt({35-t})')
            e(f'v_mfma_f32_16x16x32_bf16 {vr(D)}, {vr(A0+4*(t&1))}, {vr(WQ+4*t)}, {vr(D) if t else 0}')
        self.stamp(2)
        e(f'''v_mov_b32 v62, s{sTAG}
              v_mov_b32 v63, s{sTAG}
              s_nop 5
              v_fma_f32 v60, -v34, v{D+2}, v{D}
              v_fma_f32 v61, -v34, v{D+3}, v{D+1}
              v_mul_f32 v60, v60, v35
              v_mul_f32 v61, v61, v35
              buffer_store_dwordx4 v[60:63], v5, {srd(sWS)}, s{sT2} offen sc1''')
        self.stamp(3)
        e('s_branch L_Y_lo')

    def y_rest(self):
        e = self.e
        e(f'''L_Y_not0:
              s_cmp_ge_u32 s{sW}, 4
              s_cbranch_scc1 L_S1b''')
        if self.c.prefetch_code:
            sk = self.lab('L_nopf')
            e(f'''s_cmp_lg_u32 s{sW}, 1
                  s_cbranch_scc1 {sk}
                  s_getpc_b64 s[{sT0}:{sT1}]
                  L_pc:
                  s_sub_u32 s{sT0}, s{sT0}, L_pc-{KN}
                  s_subb_u32 s{sT1}, s{sT1}, 0
                  v_lshlrev_b32 v4, 7, v0
                  v_min_u32 v5, L_codeend-{KN}-4, v4
                  global_load_dword v250, v5, s[{sT0}:{sT1}]
                  v_add_u32 v4, 8192, v4
                  v_min_u32 v5, L_codeend-{KN}-4, v4
                  global_load_dword v251, v5, s[{sT0}:{sT1}]
                  {sk}:''')
        e('s_barrier')
        self.get_tag()
        e('s_branch L_Y_lo')

    def s1b(self):
        e = self.e
        W, G, V, D = 16, 48, 64, 80
        e('L_S1b:')
        sk = self.lab('L_noclr')
        e(f'''s_cmp_lg_u32 s{sW}, 4
              s_cbranch_scc1 {sk}
              s_lshl_b32 s{sT0}, s{sH}, 2
              s_add_u32 s{sT0}, s{sT0}, s{sJ}
              s_lshl_b32 s{sT0}, s{sT0}, 9
              s_add_u32 s{sT0}, s{sT0}, {H4}
              s_mul_i32 s{sT1}, s{sXC}, 1152
              s_lshl_b32 s{sT2}, s{sY}, 7
              s_add_u32 s{sT1}, s{sT1}, s{sT2}
              s_add_u32 s{sT1}, s{sT1}, {H56-512}
              s_cmp_lt_u32 s{sY}, 9
              s_cselect_b32 s{sT1}, s{sT1}, {OOB}
              v_mov_b32 v4, s{sT0}
              v_mov_b32 v5, s{sT1}
              v_mov_b32 v6, {OOB}
              v_cmp_gt_u32 vcc, 40, v0
              v_mov_b32 v8, -1
              v_mov_b32 v9, -1
              v_cndmask_b32 v5, v6, v5, vcc
              v_cmp_gt_u32 vcc, 32, v0
              v_mov_b32 v10, -1
              v_mov_b32 v11, -1
              v_cndmask_b32 v4, v5, v4, vcc
              v_lshl_add_u32 v4, v0, 4, v4
              buffer_store_dwordx4 v[8:11], v4, {srd(sWS)}, 0 offen sc1
              {sk}:''')
        e(f'''s_sub_u32 s{sT4}, s{sW}, 4
              v_lshrrev_b32 v4, 5, v0
              v_xor_b32 v4, v4, v1
              v_lshlrev_b32 v4, 4, v4
              v_lshl_add_u32 v4, v2, 13, v4
              s_lshl_b32 s{sT0}, s{sJ}, 2
              s_add_u32 s{sT0}, s{sT0}, s{sT4}
              s_lshl_b32 s{sT5}, s{sT0}, 7
              s_lshl_b32 s{sT0}, s{sT0}, 18
              s_lshl_b32 s{sT1}, s{sH}, 8
              s_add_u32 s{sT0}, s{sT0}, s{sT1}
              s_lshl_b32 s{sT1}, s{sT4}, 13
              s_add_u32 s{sT1}, s{sT1}, {L_WUK}
              s_mov_b32 m0, s{sT1}''')
        e(f'''v_and_b32 v5, 1, v2
              v_lshlrev_b32 v5, 1, v5
              v_xor_b32 v5, v5, v2
              v_lshlrev_b32 v5, 2, v5''')
        e('s_barrier')
        for i in range(8):
            if i: e(f'v_xor_b32 v6, {32*i}, v4')
            e(f'buffer_load_dwordx4 v{6 if i else 4}, {srd(sWUK)}, s{sT0} offen{self.NT} lds')
            if i < 7:
                e(f'''s_add_u32 m0, m0, 1024
                      s_add_u32 s{sT0}, s{sT0}, 32768''')
        self.stamp(1)
        e(f'''v_xor_b32 v6, v5, v1
              v_lshlrev_b32 v6, 4, v6
              v_lshl_add_u32 v6, v1, 9, v6
              v_add_u32 v8, s{sT1}, v6''')
        for s in range(1, 4): e(f'v_xor_b32 v{8+s}, {16*s}, v8')
        e(f'''v_lshrrev_b32 v6, 2, v1
              v_lshlrev_b32 v6, 4, v6
              v_and_b32 v7, 3, v1
              v_add3_u32 v6, v6, v5, v7
              v_lshlrev_b32 v12, 4, v6
              s_lshl_b32 s{sT2}, s{sH}, 12
              s_add_u32 s{sT2}, s{sT2}, {H1}''')
        e(f'''v_lshlrev_b32 v13, 3, v0
              v_mov_b32 v6, {OOB}
              v_cmp_gt_u32 vcc, 16, v0
              s_lshl_b32 s{sT3}, s{sH}, 11
              s_add_u32 s{sT3}, s{sT3}, s{sT5}
              s_add_u32 s{sT3}, s{sT3}, {H2}
              v_cndmask_b32 v13, v6, v13, vcc''')
        self.get_tag()
        e(f'v_mov_b32 v15, s{sTAG}')
        self.spin_init()
        def loads():
            for p in range(4):
                e(f'buffer_load_dwordx4 {vr(G+4*p)}, v12, {srd(sWS)}, s{sT2} offen offset:{1024*p} sc1')
        e(f's_waitcnt vmcnt({self.c.s1b_n})')
        loads()
        e('s_waitcnt vmcnt(4)')
        self.stamp(2)
        for t in range(2):
            for s in range(4):
                e(f'ds_read_b128 {vr(W+16*t+4*s)}, v{8+s} offset:{256*t}')
        chk = self.lab('L_chk'); top = self.lab('L_poll')
        e(f's_branch {chk}\n{top}:')
        loads()
        e(f'''{chk}:
              s_waitcnt vmcnt(0)
              v_bitop3_b32 v6, v{G+2}, v{G+6}, v15 bitop3:0x7e
              v_bitop3_b32 v7, v{G+10}, v{G+14}, v15 bitop3:0x7e
              v_or_b32 v6, v6, v7
              v_cmp_ne_u32 vcc, 0, v6''')
        self.spin_back(top, self.c.sl_h1)
        self.stamp(3)
        e(f'''v_pk_add_f32 {vr(G,2)}, {vr(G,2)}, {vr(G+4,2)}
              v_pk_add_f32 {vr(G+8,2)}, {vr(G+8,2)}, {vr(G+12,2)}
              v_pk_add_f32 {vr(G,2)}, {vr(G,2)}, {vr(G+8,2)}
              v_cvt_pk_bf16_f32 v6, v{G}, v{G+1}
              s_waitcnt lgkmcnt(0)
              s_nop 0''')
        def bc(s):
            for u in range(4):
                e(f'v_mov_b32_dpp v{V+4*s+u}, v6 row_newbcast:{4*u+s} row_mask:0xf bank_mask:0xf')
        bc(0)
        for s in range(4):
            if s < 3: bc(s+1)
            for t in range(2):
                e(f'v_mfma_f32_16x16x32_bf16 {vr(D+4*t)}, {vr(V+4*s)}, {vr(W+16*t+4*s)}, {vr(D+4*t) if s else 0}')
        e(f'''s_nop 7
              v_cvt_pk_bf16_f32 v14, v{D}, v{D+4}
              buffer_store_dwordx2 v[14:15], v13, {srd(sWS)}, s{sT3} offen sc1''')
        self.stamp(4)
        e('s_barrier')
        e(f'''s_cmp_lt_u32 s{sY}, 9
              s_cbranch_scc1 L_S3b
              s_cmp_lt_u32 s{sY}, 11
              s_cbranch_scc1 L_Yhi_S4
              s_cmp_ge_u32 s{sY}, 14
              s_cbranch_scc1 L_end
              s_cmp_eq_u32 s{sW}, 4
              s_cbranch_scc1 L_FIN
              L_end:''')
        self.end()
        e(f'''L_Yhi_S4:
              s_cmp_ge_u32 s{sW}, 6
              s_cbranch_scc1 L_end
              s_add_u32 s{sU}, s{sY}, 7''')
        self.s4_issue()
        e('''s_barrier
             s_branch L_S4''')

    def s3a(self):
        e = self.e
        B, PL, A, D, F, MK = 16, 48, 64, 80, 88, 104
        e('L_Y_lo:')
        e(f'''v_lshrrev_b32 v4, 2, v0
              v_and_b32 v5, 3, v0
              v_lshlrev_b32 v4, 13, v4
              v_lshl_add_u32 v4, v5, 4, v4
              s_lshl_b32 s{sT0}, s{sJ}, 20
              s_lshl_b32 s{sT1}, s{sH}, 8
              s_add_u32 s{sT0}, s{sT0}, s{sT1}
              s_lshl_b32 s{sT1}, s{sW}, 6
              s_add_u32 s{sT0}, s{sT0}, s{sT1}
              s_mul_i32 s{sT1}, s{sW}, 10240
              s_add_u32 s{sT1}, s{sT1}, {L_WUV}''')
        e('s_barrier')
        self.stamp(4)
        for j in range(8):
            e(f'''s_add_u32 m0, s{sT1}, {j*1280 + (0, 32, 128, 160)[j & 3]}
                  s_nop 0
                  buffer_load_dwordx4 v4, {srd(sWUV)}, s{sT0} offen{self.NT} lds''')
            if j < 7: e(f's_add_u32 s{sT0}, s{sT0}, {16*8192}')
        e(f'''v_lshrrev_b32 v6, 2, v1
              v_mul_u32_u24 v7, 1280, v6
              v_and_b32 v8, 1, v6
              v_lshl_add_u32 v7, v8, 5, v7
              v_lshrrev_b32 v8, 1, v6
              v_lshl_add_u32 v7, v8, 7, v7
              v_lshl_add_u32 v7, v2, 6, v7
              v_lshl_add_u32 v7, v5, 3, v7
              v_add_u32 v7, s{sT1}, v7''')
        sk = self.lab('L_nos4')
        e(f'''s_sub_u32 s{sT2}, s{sY}, 9
              s_cmp_ge_u32 s{sT2}, 2
              s_cbranch_scc1 {sk}
              s_add_u32 s{sU}, s{sY}, 7''')
        self.s4_issue()
        e(f'{sk}:')
        e(f'''v_and_b32 v8, 1, v1
              v_lshlrev_b32 v8, 4, v8
              v_mov_b32 v9, 0xffff
              v_lshlrev_b32 v9, v8, v9
              v_bfe_u32 v8, v1, 1, 2''')
        for rho in range(4):
            e(f'''v_cmp_eq_u32 vcc, {rho}, v8
                  s_nop 1
                  v_cndmask_b32 v{MK+rho}, 0, v9, vcc''')
        e(f'''v_and_b32 v8, 12, v1
              v_add_u32 v8, v8, v2
              v_mul_u32_u24 v8, {STS}, v8
              s_lshl_b32 s{sT2}, s{sH}, 4
              s_mul_i32 s{sT3}, s{sW}, {16*STS}
              s_add_u32 s{sT2}, s{sT2}, s{sT3}
              s_add_u32 s{sT2}, s{sT2}, {ST}
              v_lshlrev_b32 v9, 4, v0
              s_lshl_b32 s{sT3}, s{sH}, 2
              s_add_u32 s{sT3}, s{sT3}, s{sJ}
              s_lshl_b32 s{sT3}, s{sT3}, 2
              s_add_u32 s{sT3}, s{sT3}, s{sW}
              s_lshl_b32 s{sT4}, s{sT3}, 7
              s_add_u32 s{sT4}, s{sT4}, {H4}
              s_lshl_b32 s{sT3}, s{sT3}, 12
              s_add_u32 s{sT3}, s{sT3}, {PAY}
              s_lshl_b32 s{sT5}, s{sW}, 2
              s_add_u32 s{sT5}, s{sT5}, {L_ML}
              v_mov_b32 v10, s{sT5}
              v_mov_b32 v3, {L_ML}
              s_mul_i32 s{sT5}, s{sW}, 320
              s_add_u32 s{sT5}, s{sT5}, {L_CB}
              v_and_b32 v11, 1, v2
              v_lshlrev_b32 v11, 3, v11
              v_lshl_add_u32 v11, v1, 4, v11
              v_add_u32 v11, s{sT5}, v11
              v_mul_u32_u24 v12, 320, v5
              v_lshl_add_u32 v12, v2, 4, v12
              v_add_u32 v12, {L_CB}, v12
              v_lshlrev_b32 v13, 2, v0
              v_mov_b32 v14, {OOB}
              v_cmp_gt_u32 vcc, 16, v0
              s_waitcnt vmcnt(0)
              v_mov_b32 v15, -1
              v_cndmask_b32 v13, v14, v13, vcc''')
        self.stamp(5)
        for t in range(2):
            for s in range(4):
                for a in range(2):
                    e(f'ds_read_b64_tr_b16 {vr(B+16*t+4*s+2*a,2)}, v7 offset:{a*5120+s*256+t*32}')
        self.spin_init()
        top = self.lab('L_poll')
        e(f'''{top}:
              buffer_load_dwordx4 {vr(F)}, v8, {srd(sWS)}, s{sT2} offen sc1
              s_waitcnt vmcnt(0)
              v_cmp_ne_u32 vcc, s{sTAG}, v{F+2}''')
        self.spin_back(top, self.c.sl_st)
        def loads():
            for t in range(4):
                e(f'buffer_load_dwordx4 {vr(PL+4*t)}, v9, {srd(sWS)}, s{sT3} offen offset:{1024*t} sc1')
        loads()
        self.stamp(6)
        e(f'v_mov_b32 v{F+7}, v{F}')
        self.allreduce('v_max_f32', F+7, F+5, (4, 8))
        e(f'''v_sub_f32 v{F+4}, v{F}, v{F+7}
              v_exp_f32 v{F+4}, v{F+4}
              s_nop 0
              v_cvt_pk_bf16_f32 v{F+4}, v{F+4}, v{F+4}
              v_and_b32 v{F+6}, 0xffff0000, v{F+4}
              v_mul_f32 v{F+6}, v{F+6}, v{F+1}''')
        for t in range(4):
            for rho in range(4):
                e(f'v_and_b32_dpp v{A+4*t+rho}, v{F+4}, v{MK+rho} row_newbcast:{4*t} row_mask:0xf bank_mask:0xf')
        self.allreduce('v_add_f32', F+6, F+5, (4, 8))
        e(f'ds_write2_b32 v10, v{F+7}, v{F+6} offset0:0 offset1:4')
        chk = self.lab('L_chk'); top = self.lab('L_poll')
        self.spin_init()
        e(f's_branch {chk}\n{top}:')
        loads()
        e(f'{chk}:')
        for t in range(4):
            p = PL + 4*t
            e(f's_waitcnt vmcnt({3-t})')
            e(f'v_mfma_f32_16x16x32_bf16 {vr(D)}, {vr(A+4*t)}, {vr(p)}, {vr(D) if t else 0}')
            if t == 0:
                e(f'''v_max3_u32 v6, v{p}, v{p+1}, v{p+2}
                      v_max_u32 v6, v6, v{p+3}''')
            else:
                e(f'''v_max3_u32 v6, v6, v{p}, v{p+1}
                      v_max3_u32 v6, v6, v{p+2}, v{p+3}''')
        e(f'v_cmp_eq_u32 vcc, v15, v6')
        self.spin_back(top, self.c.sl_pay)
        self.stamp(7)
        e(f'''s_nop 3
              v_cvt_pk_bf16_f32 v{D+4}, v{D}, v{D+1}
              v_cvt_pk_bf16_f32 v{D+5}, v{D+2}, v{D+3}
              ds_write_b64 v11, {vr(D+4,2)}
              s_waitcnt lgkmcnt(0)
              s_barrier''')
        for s in range(4):
            e(f'ds_read_b128 {vr(A+4*s)}, v12 offset:{64*s}')
            if s == 0:
                e(f'''ds_read_b128 {vr(F)}, v3
                      ds_read_b128 {vr(F+4)}, v3 offset:16''')
        fill = ['', f's_waitcnt lgkmcnt(2)\nv_max3_f32 v6, v{F}, v{F+1}, v{F+2}\nv_max_f32 v6, v6, v{F+3}',
                f'v_sub_f32 v{F}, v{F}, v6\nv_sub_f32 v{F+1}, v{F+1}, v6',
                f'v_sub_f32 v{F+2}, v{F+2}, v6\nv_sub_f32 v{F+3}, v{F+3}, v6\ns_waitcnt lgkmcnt(1)',
                f'v_exp_f32 v{F}, v{F}', f'v_exp_f32 v{F+1}, v{F+1}\ns_waitcnt lgkmcnt(0)', f'v_exp_f32 v{F+2}, v{F+2}', f'v_exp_f32 v{F+3}, v{F+3}']
        e('s_waitcnt lgkmcnt(5)')
        for s in range(4):
            for t in range(2):
                e(f'v_mfma_f32_16x16x32_bf16 {vr(D+4*t)}, {vr(A+4*s)}, {vr(B+16*t+4*s)}, {vr(D+4*t) if s else 0}')
                e(fill[2*s+t])
        e(f'''v_mul_f32 v6, v{F}, v{F+4}
              v_fmac_f32 v6, v{F+1}, v{F+5}
              v_fmac_f32 v6, v{F+2}, v{F+6}
              v_fmac_f32 v6, v{F+3}, v{F+7}
              v_rcp_f32 v6, v6
              v_mul_f32 v{D}, v{D}, v{F}
              v_fmac_f32 v{D}, v{D+1}, v{F+1}
              v_mul_f32 v{D+4}, v{D+4}, v{F}
              v_fmac_f32 v{D}, v{D+2}, v{F+2}
              v_fmac_f32 v{D+4}, v{D+5}, v{F+1}
              v_fmac_f32 v{D}, v{D+3}, v{F+3}
              v_fmac_f32 v{D+4}, v{D+6}, v{F+2}
              v_mul_f32 v{D}, v{D}, v6
              v_fmac_f32 v{D+4}, v{D+7}, v{F+3}
              v_mul_f32 v{D+4}, v{D+4}, v6
              v_cvt_pk_bf16_f32 v6, v{D}, v{D+4}
              buffer_store_dword v6, v13, {srd(sWS)}, s{sT4} offen sc1''')
        self.stamp(8)
        e(f'''s_sub_u32 s{sT2}, s{sY}, 9
              s_cmp_lt_u32 s{sT2}, 2
              s_cbranch_scc1 L_S4''')
        self.end()

    def s3b(self):
        e = self.e
        B, D, G = 16, 80, 144
        e('L_S3b:')
        e(f'''v_lshrrev_b32 v4, 3, v0
              v_mul_u32_u24 v4, 1152, v4
              v_and_b32 v5, 7, v0
              v_lshl_add_u32 v4, v5, 4, v4
              s_lshl_b32 s{sT0}, s{sXC}, 2
              s_add_u32 s{sT2}, s{sT0}, s{sT4}
              s_mul_i32 s{sT0}, s{sT2}, {128*1152}
              s_lshl_b32 s{sT1}, s{sY}, 7
              s_add_u32 s{sT0}, s{sT0}, s{sT1}
              s_mul_i32 s{sT1}, s{sT4}, 16640
              s_add_u32 m0, s{sT1}, {L_WO}''')
        self.dma_loop(16, 4, sWO, sT0, 8*1152, 1040)
        e(f'''v_bfe_u32 v5, v1, 2, 1
              v_lshl_add_u32 v5, v2, 1, v5
              v_mul_u32_u24 v5, 2080, v5
              v_lshrrev_b32 v6, 3, v1
              v_lshl_add_u32 v5, v6, 7, v5
              v_and_b32 v6, 3, v1
              v_lshl_add_u32 v5, v6, 3, v5
              v_add_u32 v5, s{sT1}, v5''')
        e(f'''v_lshrrev_b32 v7, 2, v1
              v_lshl_add_u32 v7, v7, 2, v2
              v_lshlrev_b32 v7, 7, v7
              v_lshl_add_u32 v7, v6, 4, v7
              s_lshl_b32 s{sT2}, s{sT2}, 11
              s_add_u32 s{sT2}, s{sT2}, {H4}''')
        e(f'''v_lshlrev_b32 v8, 2, v0
              s_lshl_b32 s{sT3}, s{sY}, 7
              s_cmp_eq_u32 s{sXC}, 0
              s_cselect_b32 s{sT5}, s{sT3}, 4096
              v_add_u32 v9, s{sT5}, v8
              buffer_load_dword v12, v9, {srd(sX)}, 0 offen
              s_lshl_b32 s{sT5}, s{sT4}, 8
              s_add_u32 s{sT5}, s{sT5}, {L_EX}
              v_add_u32 v9, s{sT5}, v8
              v_lshlrev_b32 v10, 3, v0
              v_and_b32 v10, 0xff, v10
              v_add_u32 v10, {L_EX}, v10
              v_mov_b32 v11, {OOB}
              v_cmp_gt_u32 vcc, 32, v0
              s_mul_i32 s{sT5}, s{sXC}, 1152
              s_add_u32 s{sT3}, s{sT3}, s{sT5}
              s_add_u32 s{sT3}, s{sT3}, {H56}
              v_cndmask_b32 v8, v11, v8, vcc
              v_mov_b32 v15, -1
              s_waitcnt vmcnt(0)
              v_and_b32 v13, 0xffff0000, v12
              v_lshlrev_b32 v12, 16, v12''')
        self.stamp(5)
        for T in range(4):
            for s in range(4):
                for a in range(2):
                    e(f'ds_read_b64_tr_b16 {vr(B+16*T+4*s+2*a,2)}, v5 offset:{(s>>1)*1040+(4*(s&1)+2*a)*128+T*32}')
        e('''s_waitcnt lgkmcnt(0)
             s_barrier''')
        self.stamp(6)
        self.spin_init()
        top = self.lab('L_poll')
        e(f'''{top}:
              buffer_load_dwordx4 {vr(G)}, v7, {srd(sWS)}, s{sT2} offen sc1
              s_waitcnt vmcnt(0)
              v_max3_u32 v6, v{G}, v{G+1}, v{G+2}
              v_max_u32 v6, v6, v{G+3}
              v_cmp_eq_u32 vcc, v15, v6''')
        self.spin_back(top, self.c.sl_h4)
        self.stamp(7)
        def red(T):
            d = D + 16*T
            e(f'''v_add_f32 v{d}, v{d}, v{d+5}
                  v_add_f32 v{d+10}, v{d+10}, v{d+15}
                  v_add_f32 v{d}, v{d}, v{d+10}''')
        for T in range(4):
            for s in range(4):
                e(f'v_mfma_f32_16x16x32_bf16 {vr(D+16*T+4*s)}, {vr(G)}, {vr(B+16*T+4*s)}, 0')
            if T >= 2: red(T-2)
        e('s_nop 0')
        red(2)
        e('s_nop 0')
        red(3)
        self.swap_reduce(D, D+16, D+32, D+48)
        e(f'''ds_write_b32 v9, v{D}
              s_waitcnt lgkmcnt(0)
              s_barrier
              s_cmp_lg_u32 s{sW}, 4
              s_cbranch_scc1 L_end
              ds_read2_b64 {vr(D)}, v10 offset0:0 offset1:32
              ds_read2_b64 {vr(D+4)}, v10 offset0:64 offset1:96
              s_waitcnt lgkmcnt(1)
              v_pk_add_f32 v[12:13], v[12:13], {vr(D,2)}
              v_pk_add_f32 v[12:13], v[12:13], {vr(D+2,2)}
              s_waitcnt lgkmcnt(0)
              v_pk_add_f32 {vr(D+4,2)}, {vr(D+4,2)}, {vr(D+6,2)}
              v_pk_add_f32 v[12:13], v[12:13], {vr(D+4,2)}
              v_cvt_pk_bf16_f32 v6, v12, v13
              buffer_store_dword v6, v8, {srd(sWS)}, s{sT3} offen sc1''')
        self.stamp(8)
        self.end()

    def s4_issue(self):
        e = self.e
        sk = self.lab('L_now1')
        e(f'''s_mul_i32 s{sT2}, s{sXC}, 18
              s_add_u32 s{sU}, s{sU}, s{sT2}
              s_cmp_ge_u32 s{sW}, 3
              s_cbranch_scc1 {sk}
              v_lshrrev_b32 v120, 2, v0
              v_mul_u32_u24 v120, 9216, v120
              v_and_b32 v121, 3, v0
              v_lshl_add_u32 v120, v121, 4, v120
              s_mul_i32 s{sT2}, s{sW}, {192*9216}
              s_lshl_b32 s{sT3}, s{sU}, 6
              s_add_u32 s{sT2}, s{sT2}, s{sT3}
              s_mul_i32 s{sT3}, s{sW}, {12*1056}
              s_add_u32 m0, s{sT3}, {L_W1}''')
        self.dma_loop(12, 120, sW1, sT2, 16*9216, 1056)
        e(f'{sk}:')
        for i in range(3):
            e(f'''v_add_u32 v120, {64*i}, v0
                  v_mul_u32_u24 v121, 5462, v120
                  v_lshrrev_b32 v121, 16, v121
                  v_mul_u32_u24 v121, {1152-192}, v121
                  v_lshl_add_u32 v{122+i}, v120, 4, v121''')
        e(f'''s_mul_i32 s{sT2}, s{sU}, {32*1152}
              s_mul_i32 s{sT3}, s{sW}, 192
              s_add_u32 s{sT2}, s{sT2}, s{sT3}
              s_mul_i32 s{sT3}, s{sW}, 6144
              s_add_u32 m0, s{sT3}, {L_W2}''')
        for i in range(6):
            if i == 3: e(f's_add_u32 s{sT2}, s{sT2}, {16*1152}')
            else: e('s_nop 0')
            e(f'buffer_load_dwordx4 v{122+i%3}, {srd(sW2)}, s{sT2} offen{self.NT} lds')
            if i < 5: e('s_add_u32 m0, m0, 1024')

    def clear_check(self, va, g):
        e = self.e
        top = self.lab('L_poll')
        self.spin_init()
        e(f'''v_lshlrev_b32 v{va}, 9, v0
              s_mov_b32 s{sT2}, {H2}
              s_mov_b32 s{sT3}, {H2+32768}
              v_mov_b32 v{g+4}, s{sTAG}
              {top}:
              buffer_load_dwordx2 {vr(g,2)}, v{va}, {srd(sWS)}, s{sT2} offen sc1
              buffer_load_dwordx2 {vr(g+2,2)}, v{va}, {srd(sWS)}, s{sT3} offen sc1
              s_waitcnt vmcnt(0)
              v_bitop3_b32 v{g}, v{g+1}, v{g+3}, v{g+4} bitop3:0x7e
              v_cmp_ne_u32 vcc, 0, v{g}''')
        self.spin_back(top)

    def s4(self):
        e = self.e
        B2, B1, ONE, Lr, GR, RS, D, A = 16, 40, 88, 92, 104, 108, 112, 128
        e('L_S4:')
        self.stamp(9)
        e(f'''v_lshrrev_b32 v4, 2, v1
              v_and_b32 v5, 3, v1
              v_lshl_add_u32 v6, v2, 3, v4
              v_mul_u32_u24 v6, 192, v6
              v_lshl_add_u32 v6, v5, 3, v6
              s_mul_i32 s{sT0}, s{sW}, 6144
              s_add_u32 s{sT0}, s{sT0}, {L_W2}
              v_add_u32 v6, s{sT0}, v6
              v_and_b32 v7, 7, v1
              v_lshl_add_u32 v7, v2, 3, v7
              v_lshlrev_b32 v7, 2, v7
              v_add_u32 v7, {L_EX}, v7
              v_mov_b32 v8, {L_EX}
              v_lshlrev_b32 v9, 4, v0
              v_mov_b32 v10, {OOB}
              v_cmp_gt_u32 vcc, 16, v0
              s_mul_i32 s{sT4}, s{sU}, 1536
              s_lshl_b32 s{sT0}, s{sW}, 8
              s_add_u32 s{sT4}, s{sT4}, s{sT0}
              s_add_u32 s{sT4}, s{sT4}, {H7}
              v_cndmask_b32 v9, v10, v9, vcc
              s_cmp_ge_u32 s{sW}, 3
              s_cbranch_scc1 L_S4_hi''')
        self.clear_check(10, Lr)
        self.stamp(10)
        e(f'''v_mul_u32_u24 v10, 1056, v2
              v_lshl_add_u32 v10, v4, 6, v10
              v_lshl_add_u32 v10, v5, 3, v10
              s_mul_i32 s{sT0}, s{sW}, {12*1056}
              s_add_u32 s{sT0}, s{sT0}, {L_W1}
              v_add_u32 v10, s{sT0}, v10''')
        for b in range(3):
            for s in range(2):
                for t in range(2):
                    for a in range(2):
                        e(f'ds_read_b64_tr_b16 {vr(B1+16*b+8*s+4*t+2*a,2)}, v10 offset:{4*b*1056+(8*s+4*a)*64+t*32}')
        def w2reads():
            for t in range(6):
                for a in range(2):
                    e(f'ds_read_b64_tr_b16 {vr(B2+4*t+2*a,2)}, v6 offset:{4*a*192+t*32}')
        w2reads()
        for k in range(4): e(f'v_mov_b32 v{ONE+k}, 0x3f803f80')
        e(f'''v_lshrrev_b32 v11, 1, v1
              v_mul_u32_u24 v11, 1152, v11
              v_and_b32 v12, 1, v1
              v_cmp_ne_u32 s[{sT2}:{sT3}], 0, v12
              v_lshl_add_u32 v12, v2, 1, v12
              v_lshl_add_u32 v11, v12, 4, v11
              s_mul_i32 s{sT1}, s{sW}, 384
              s_add_u32 s{sT1}, s{sT1}, {H56}
              s_lshl_b32 s{sT0}, s{sW}, 8
              s_add_u32 s{sT0}, s{sT0}, {L_EX}
              v_lshl_add_u32 v12, v0, 2, s{sT0}
              v_mov_b32 v15, -1
              s_waitcnt lgkmcnt(0)''')
        for b in range(3):
            for s in range(2):
                for t in range(2):
                    e(f'v_mfma_f32_16x16x32_bf16 {vr(D+4*t)}, {vr(ONE)}, {vr(B1+16*b+8*s+4*t)}, {vr(D+4*t) if (b or s) else 0}')
        e(f'''v_cmp_gt_u32 vcc, 16, v0
              s_nop 6
              v_cndmask_b32 v13, v{D+4}, v{D}, vcc
              ds_write_b32 v12, v13 offset:{L_CS-L_EX}
              s_waitcnt lgkmcnt(0)
              s_barrier''')
        def csread():
            e(f'''ds_read2st64_b32 v[{A}:{A+1}], v7 offset0:{(L_CS-L_EX)//256} offset1:{(L_CS-L_EX)//256+1}
                  ds_read_b32 v14, v7 offset:{L_CS-L_EX+512}
                  s_waitcnt lgkmcnt(0)
                  v_add_f32 v14, v14, v{A}
                  v_add_f32 v14, v14, v{A+1}''')
        csread()
        self.stamp(11)
        self.spin_init()
        top = self.lab('L_poll')
        e(f'{top}:')
        for b in range(3):
            e(f'buffer_load_dwordx4 {vr(Lr+4*b)}, v11, {srd(sWS)}, s{sT1} offen offset:{128*b} sc1')
        e(f'''s_waitcnt vmcnt(0)
              v_max3_u32 v13, v{Lr}, v{Lr+1}, v{Lr+2}''')
        for k in range(3, 11, 2):
            e(f'v_max3_u32 v13, v13, v{Lr+k}, v{Lr+k+1}')
        e(f'''v_max_u32 v13, v13, v{Lr+11}
              v_cmp_eq_u32 vcc, v15, v13''')
        self.spin_back(top, self.c.sl_h56)
        self.stamp(12)
        for b in range(3):
            e(f'v_mfma_f32_16x16x32_bf16 {vr(GR)}, {vr(Lr+4*b)}, {vr(Lr+4*b)}, {vr(GR) if b else 0}')
        for b in range(3):
            e(f'v_mfma_f32_16x16x32_bf16 {vr(RS)}, {vr(Lr+4*b)}, {vr(ONE)}, {vr(RS) if b else 0}')
        fill = [None]*12
        fill[4] = f'v_add_f32 v{GR}, v{GR}, v{GR+2}\nv_add_f32 v{GR+1}, v{GR+1}, v{GR+3}'
        fill[5] = f'v_cndmask_b32 v{GR}, v{GR}, v{GR+1}, s[{sT2}:{sT3}]\nv_add_f32 v{RS}, v{RS}, v{RS+1}'
        fill[6] = f'v_add_f32_dpp v{GR}, v{GR}, v{GR} row_ror:1 row_mask:0xf bank_mask:0xf\nv_add_f32 v{RS+2}, v{RS+2}, v{RS+3}'
        fill[7] = f'v_add_f32_dpp v{GR}, v{GR}, v{GR} row_ror:2 row_mask:0xf bank_mask:0xf\nv_add_f32 v{RS}, v{RS}, v{RS+2}'
        fill[8] = f'v_add_f32_dpp v{GR}, v{GR}, v{GR} row_ror:4 row_mask:0xf bank_mask:0xf'
        fill[10] = f'v_add_f32_dpp v{GR}, v{GR}, v{GR} row_ror:8 row_mask:0xf bank_mask:0xf'
        k = 0
        for t in range(2):
            for s in range(2):
                for b in range(3):
                    d = D + 8*t + 4*s
                    e(f'v_mfma_f32_16x16x32_bf16 {vr(d)}, {vr(Lr+4*b)}, {vr(B1+16*b+8*s+4*t)}, {vr(d) if b else 0}')
                    if fill[k]: e(fill[k])
                    k += 1
        e(f'''v_add_f32 v{D}, v{D}, v{D+2}
              v_add_f32 v{D+5}, v{D+5}, v{D+7}
              v_add_f32 v{D}, v{D}, v{D+5}
              s_nop 1
              v_add_f32 v{D+8}, v{D+8}, v{D+10}
              s_nop 1
              v_add_f32 v{D+13}, v{D+13}, v{D+15}
              v_add_f32 v{D+8}, v{D+8}, v{D+13}''')
        self.swap_reduce(D, D+8, RS, GR)
        e(f'''ds_write_b32 v12, v{D}
              s_waitcnt lgkmcnt(0)
              s_branch L_S4_p2''')
        e('''L_S4_hi:
             s_waitcnt vmcnt(0)''')
        w2reads()
        e('''s_waitcnt lgkmcnt(0)
             s_barrier''')
        csread()
        e('L_S4_p2:')
        e(f'''s_barrier
              ds_read2_b32 v[{A}:{A+1}], v8 offset0:32 offset1:48
              ds_read2_b32 v[{A+2}:{A+3}], v8 offset0:96 offset1:112
              ds_read2_b32 v[{A+4}:{A+5}], v8 offset0:160 offset1:176
              ds_read2st64_b32 v[{A+6}:{A+7}], v7 offset0:0 offset1:1
              ds_read_b32 v{A+8}, v7 offset:512''')
        self.stamp(13)
        e(f'''v_mov_b32 v{A+10}, {hex(f2u(1/576))}
              v_mov_b32 v{A+11}, {hex(f2u(1/576))}
              v_mov_b32 v{A+15}, s{sTAG}
              s_waitcnt lgkmcnt(2)
              v_pk_add_f32 v[{A}:{A+1}], v[{A}:{A+1}], v[{A+2}:{A+3}]
              v_pk_add_f32 v[{A}:{A+1}], v[{A}:{A+1}], v[{A+4}:{A+5}]
              v_pk_mul_f32 v[{A}:{A+1}], v[{A}:{A+1}], v[{A+10}:{A+11}]
              v_fma_f32 v{A+1}, -v{A}, v{A}, v{A+1}
              v_add_f32 v{A+1}, {hex(f2u(1e-5))}, v{A+1}
              v_rsq_f32 v{A+1}, v{A+1}
              s_waitcnt lgkmcnt(0)
              v_add_f32 v{A+6}, v{A+6}, v{A+7}
              v_fma_f32 v{A+8}, -v{A}, v14, v{A+8}
              v_add_f32 v{A+6}, v{A+6}, v{A+8}
              v_mul_f32 v{A+6}, v{A+6}, v{A+1}
              v_mul_f32 v{A+7}, {hex(f2u(-math.log2(math.e)))}, v{A+6}
              v_exp_f32 v{A+7}, v{A+7}
              s_nop 0
              v_add_f32 v{A+7}, 1.0, v{A+7}
              v_rcp_f32 v{A+7}, v{A+7}
              s_nop 0
              v_mul_f32 v{A+6}, v{A+6}, v{A+7}
              s_nop 1
              v_mov_b32_dpp v{A+7}, v{A+6} quad_perm:[1,1,3,3] row_mask:0xf bank_mask:0xf
              v_cvt_pk_bf16_f32 v{A+6}, v{A+6}, v{A+7}
              s_nop 1''')
        for rho in range(4):
            e(f'v_mov_b32_dpp v{A+rho}, v{A+6} row_newbcast:{2*rho} row_mask:0xf bank_mask:0xf')
        e('s_nop 1')
        O = 144
        for t in range(6):
            e(f'v_mfma_f32_16x16x32_bf16 {vr(O+4*t)}, {vr(A)}, {vr(B2+4*t)}, 0')
        e(f'''s_nop 3
              v_cvt_pk_bf16_f32 v{A+12}, v{O}, v{O+4}
              s_nop 0
              v_cvt_pk_bf16_f32 v{A+13}, v{O+8}, v{O+12}
              s_nop 0
              v_cvt_pk_bf16_f32 v{A+14}, v{O+16}, v{O+20}
              buffer_store_dwordx4 {vr(A+12)}, v9, {srd(sWS)}, s{sT4} offen sc1''')
        self.stamp(14)
        self.end()

    def fin(self):
        e = self.e
        G, HF, A, D = 16, 56, 64, 68
        e('''L_FIN:
             s_barrier''')
        self.clear_check(4, G)
        e(f'''s_mul_i32 s{sT0}, s{sXC}, 3
              s_add_u32 s{sT0}, s{sT0}, s{sY}
              s_sub_u32 s{sU}, s{sT0}, 11
              s_lshr_b32 s{sT0}, s{sU}, 2
              s_and_b32 s{sT1}, s{sU}, 3
              s_mul_i32 s{sT2}, s{sT0}, 192
              s_lshl_b32 s{sT3}, s{sT1}, 3
              s_add_u32 s{sT2}, s{sT2}, s{sT3}
              s_add_u32 s{sT3}, s{sT2}, {H56}
              s_lshl_b32 s{sT4}, s{sU}, 6
              s_add_u32 s{sT4}, s{sT4}, {H7}
              v_lshrrev_b32 v4, 2, v1
              v_and_b32 v5, 3, v1
              v_lshl_add_u32 v6, v4, 2, v2
              v_mul_u32_u24 v7, 1152, v6
              v_lshl_add_u32 v7, v5, 1, v7
              v_mov_b32 v8, {OOB}
              v_cmp_gt_u32 vcc, 2, v4
              v_mul_u32_u24 v9, 1536, v6
              v_lshl_add_u32 v9, v5, 4, v9
              v_cndmask_b32 v7, v8, v7, vcc
              v_lshlrev_b32 v10, 7, v2
              v_lshl_add_u32 v10, v5, 1, v10
              v_cmp_eq_u32 vcc, 0, v4
              v_and_b32 v12, 1, v1
              v_lshlrev_b32 v12, 4, v12
              v_cndmask_b32 v10, v8, v10, vcc
              v_cmp_gt_u32 vcc, 2, v2
              v_mov_b32 v13, 0x3f80
              v_lshlrev_b32 v13, v12, v13
              v_cndmask_b32 v10, v8, v10, vcc
              v_cmp_eq_u32 vcc, 0, v2
              v_lshrrev_b32 v12, 1, v1
              v_mov_b32 v{A+3}, 0
              v_cndmask_b32 v11, v8, v10, vcc''')
        for rho in range(3):
            e(f'''v_cmp_eq_u32 vcc, {rho}, v12
                  s_nop 1
                  v_cndmask_b32 v{A+rho}, 0, v13, vcc''')
        e(f'''v_mov_b32 v14, 0xffff
              v_mov_b32 v15, s{sTAG}''')
        self.spin_init()
        top = self.lab('L_poll')
        e(f'{top}:')
        for t in range(6):
            e(f'buffer_load_ushort v{G+t}, v7, {srd(sWS)}, s{sT3} offen offset:{32*t} sc1')
        e(f'''s_waitcnt vmcnt(0)
              v_max3_u32 v12, v{G}, v{G+1}, v{G+2}
              v_max3_u32 v12, v12, v{G+3}, v{G+4}
              v_max_u32 v12, v12, v{G+5}
              v_cmp_eq_u32 vcc, v14, v12''')
        self.spin_back(top, 2)
        self.stamp(12)
        for k in range(3):
            e(f'v_lshl_or_b32 v{HF+k}, v{G+2*k+1}, 16, v{G+2*k}')
        e(f'v_mov_b32 v{HF+3}, 0')
        for i in range(1, 9):
            e(f'v_add_u32 v{72+i}, {i*16*1536}, v9')
        self.spin_init()
        top = self.lab('L_poll')
        e(f'{top}:')
        for i in range(9):
            e(f'buffer_load_dwordx4 {vr(G+4*i)}, v{72+i if i else 9}, {srd(sWS)}, s{sT4} offen sc1')
        e(f'v_mfma_f32_16x16x32_bf16 {vr(D)}, {vr(A)}, {vr(HF)}, 0')
        for i in range(9):
            e(f's_waitcnt vmcnt({8-i})')
            e(f'v_mfma_f32_16x16x32_bf16 {vr(D)}, {vr(A)}, {vr(G+4*i)}, {vr(D)}')
            if i == 0: e(f'v_xor_b32 v12, v15, v{G+3}')
            else: e(f'v_bitop3_b32 v12, v12, v{G+4*i+3}, v15 bitop3:0xf6')
        e('v_cmp_ne_u32 vcc, 0, v12')
        self.spin_back(top, self.c.sl_h7)
        self.stamp(13)
        e('s_nop 4')
        for k in (4, 8):
            for r in range(4):
                e(f'v_add_f32_dpp v{D+r}, v{D+r}, v{D+r} row_ror:{k} row_mask:0xf bank_mask:0xf')
        e(f'''v_cvt_pk_bf16_f32 v12, v{D}, v{D+1}
              v_cvt_pk_bf16_f32 v13, v{D+2}, v{D+3}
              buffer_store_short v12, v10, {srd(sOUT)}, s{sT2} offen
              buffer_store_short_d16_hi v12, v10, {srd(sOUT)}, s{sT2} offen offset:32
              buffer_store_short v13, v11, {srd(sOUT)}, s{sT2} offen offset:64
              buffer_store_short_d16_hi v13, v11, {srd(sOUT)}, s{sT2} offen offset:96''')
        self.stamp(14)
        e(f'''s_cmp_lg_u32 s{sU}, 0
              s_cbranch_scc1 L_end
              v_cmp_eq_u32 vcc, 0, v0
              v_mov_b32 v4, 0
              s_nop 0
              v_cndmask_b32 v4, v8, v4, vcc
              buffer_store_dword v15, v4, {srd(sWS)}, 0 offen''')
        self.end()

    def x_path(self):
        e = self.e
        e(f'''L_X:
              s_sub_u32 s{sY}, s{sY}, 16
              s_lshr_b32 s{sH}, s{sY}, 1
              s_lshl_b32 s{sT0}, s{sXC}, 3
              s_add_u32 s{sH}, s{sH}, s{sT0}
              s_and_b32 s{sJ}, s{sY}, 1
              s_cmp_ge_u32 s{sW}, 4
              s_cbranch_scc1 L_PV''')
        K, Q, D = 128, 64, 16
        e(f'''v_lshlrev_b32 v4, 4, v0
              s_lshl_b32 s{sT0}, s{sH}, 17
              s_lshl_b32 s{sT1}, s{sW}, 15
              s_add_u32 s{sT0}, s{sT0}, s{sT1}
              s_mul_i32 s{sT1}, s{sW}, {32*1040}
              s_mov_b32 m0, s{sT1}''')
        if self.c.x_tagfirst: self.get_tag()
        if self.c.x_sleep: e(f's_sleep {self.c.x_sleep}')
        if self.c.stagger:
            e(f'''s_lshl_b32 s{sT2}, s{sJ}, 14
                  s_add_u32 s{sT3}, s{sT0}, s{sT2}''')
            self.dma_loop(16, 4, sCKV, sT3, 1024, 1040)
            e(f'''s_xor_b32 s{sT2}, s{sT2}, 16384
                  s_add_u32 s{sT3}, s{sT0}, s{sT2}''')
            self.dma_loop(16, 4, sCKV, sT3, 1024, 1040)
        else:
            self.dma_loop(32, 4, sCKV, sT0, 1024, 1040)
        self.stamp(1)
        e(f'''v_and_b32 v5, 7, v1
              v_lshrrev_b32 v6, 3, v1
              v_lshl_add_u32 v5, v5, 1, v6
              v_mul_u32_u24 v5, 1040, v5
              v_lshl_add_u32 v5, v2, 8, v5
              v_add_u32 v5, s{sT1}, v5
              v_mul_u32_u24 v6, 1040, v1
              v_lshl_add_u32 v6, v2, 8, v6
              v_add_u32 v6, {L_QA}, v6
              v_lshlrev_b32 v7, 2, v1
              v_add_u32 v7, {L_MX}, v7
              s_lshl_b32 s{sT2}, s{sW}, 10
              s_add_u32 s{sT2}, s{sT2}, {L_PB}
              v_add_u32 v8, s{sT2}, v4
              v_mov_b32 v9, 0xff800000
              v_mul_u32_u24 v3, 80, v1
              v_add_u32 v3, {L_LS}, v3
              s_lshl_b32 s{sT2}, s{sW}, 4
              v_lshl_add_u32 v10, v2, 2, s{sT2}
              v_add_u32 v10, v10, v3
              v_mov_b32 v11, {OOB}
              v_cmp_gt_u32 vcc, 16, v0
              s_mul_i32 s{sT2}, s{sH}, {STS}
              s_lshl_b32 s{sT3}, s{sJ}, 8
              s_add_u32 s{sT2}, s{sT2}, s{sT3}
              s_add_u32 s{sT2}, s{sT2}, {ST}
              v_cndmask_b32 v11, v11, v4, vcc''')
        if not self.c.x_tagfirst: self.get_tag()
        e(f'''v_mov_b32 v14, s{sTAG}
              v_mov_b32 v15, s{sTAG}
              ds_write_b32 v7, v9''')
        n = self.c.x_n
        assert n <= 16
        e('s_waitcnt vmcnt(16)')
        for s in range(16): e(f'ds_read_b128 {vr(K+4*s)}, v5 offset:{16*s}')
        e(f'''s_waitcnt vmcnt({n})
              s_barrier''')
        self.stamp(2)
        e('s_waitcnt vmcnt(0)')
        self.stamp(3)
        for s in range(16): e(f'ds_read_b128 {vr(K+64+4*s)}, v5 offset:{16640+16*s}')
        e('''s_waitcnt lgkmcnt(0)
             s_barrier''')
        self.stamp(4)
        PRE = 12
        for s in range(PRE): e(f'ds_read_b128 {vr(Q+4*s)}, v6 offset:{16*s}')
        for s in range(16):
            issued = min(16, PRE + s)
            e(f's_waitcnt lgkmcnt({issued-1-s})')
            for t in range(2):
                e(f'v_mfma_f32_16x16x32_bf16 {vr(D+4*t)}, {vr(K+64*t+4*s)}, {vr(Q+4*s)}, {vr(D+4*t) if s else 0}')
            if PRE + s < 16: e(f'ds_read_b128 {vr(Q+4*(PRE+s))}, v6 offset:{16*(PRE+s)}')
        e(f'''s_nop 6
              v_max3_f32 v9, v{D}, v{D+1}, v{D+2}
              v_max3_f32 v9, v9, v{D+3}, v{D+4}
              v_max3_f32 v9, v9, v{D+5}, v{D+6}
              v_max_f32 v9, v9, v{D+7}
              ds_max_f32 v7, v9
              s_waitcnt lgkmcnt(0)
              s_barrier
              ds_read_b32 v12, v7''')
        self.stamp(5)
        e('s_waitcnt lgkmcnt(0)')
        for k in range(8): e(f'v_sub_f32 v{D+k}, v{D+k}, v12')
        for k in range(8): e(f'v_exp_f32 v{D+k}, v{D+k}')
        for k in range(4): e(f'v_cvt_pk_bf16_f32 v{D+8+k}, v{D+2*k}, v{D+2*k+1}')
        e(f'''ds_write_b128 v8, {vr(D+8)}
              v_pk_add_f32 {vr(D,2)}, {vr(D,2)}, {vr(D+2,2)}
              v_pk_add_f32 {vr(D+4,2)}, {vr(D+4,2)}, {vr(D+6,2)}
              v_pk_add_f32 {vr(D,2)}, {vr(D,2)}, {vr(D+4,2)}
              v_add_f32 v{D}, v{D}, v{D+1}
              ds_write_b32 v10, v{D}
              s_waitcnt lgkmcnt(0)
              s_barrier''')
        self.stamp(6)
        sk = self.lab('L_nostat')
        e(f'''s_cmp_lg_u32 s{sW}, 0
              s_cbranch_scc1 {sk}''')
        for s in range(4): e(f'ds_read_b128 {vr(D+4*s)}, v3 offset:{16*s}')
        e(f'''s_waitcnt lgkmcnt(2)
              v_pk_add_f32 {vr(D,2)}, {vr(D,2)}, {vr(D+2,2)}
              v_pk_add_f32 {vr(D+4,2)}, {vr(D+4,2)}, {vr(D+6,2)}
              v_pk_add_f32 {vr(D,2)}, {vr(D,2)}, {vr(D+4,2)}
              s_waitcnt lgkmcnt(0)
              v_pk_add_f32 {vr(D+8,2)}, {vr(D+8,2)}, {vr(D+10,2)}
              v_pk_add_f32 {vr(D+12,2)}, {vr(D+12,2)}, {vr(D+14,2)}
              v_pk_add_f32 {vr(D,2)}, {vr(D,2)}, {vr(D+8,2)}
              v_pk_add_f32 {vr(D,2)}, {vr(D,2)}, {vr(D+12,2)}
              v_add_f32 v13, v{D}, v{D+1}''')
        e(f'buffer_store_dwordx4 v[12:15], v11, {srd(sWS)}, s{sT2} offen sc1')
        self.stamp(7)
        e(f'{sk}:')
        e('s_branch L_X_D')
        V, G, P, DD = 128, 16, 48, 64
        e(f'''L_PV:
              s_sub_u32 s{sT4}, s{sW}, 4
              v_lshlrev_b32 v4, 18, v2
              v_lshl_add_u32 v4, v1, 4, v4
              s_lshl_b32 s{sT0}, s{sJ}, 20
              s_lshl_b32 s{sT1}, s{sT4}, 14
              s_add_u32 s{sT0}, s{sT0}, s{sT1}
              s_lshl_b32 s{sT1}, s{sH}, 8
              s_add_u32 s{sT0}, s{sT0}, s{sT1}
              s_add_u32 s{sT0}, s{sT0}, {PAY}
              s_add_u32 s{sT1}, s{sT0}, 65536
              s_add_u32 s{sT2}, s{sT0}, {2*65536}
              s_add_u32 s{sT3}, s{sT0}, {3*65536}''')
        for k in range(4): e(f'v_mov_b32 v{G+k}, -1')
        for r in range(4): e(f'buffer_store_dwordx4 {vr(G)}, v4, {srd(sWS)}, s{sT0+r} offen sc1')
        e(f'''v_and_b32 v5, 1, v2
              v_lshlrev_b32 v5, 3, v5
              v_lshrrev_b32 v6, 2, v1
              v_lshl_add_u32 v5, v6, 1, v5
              v_lshrrev_b32 v6, 1, v2
              v_add_u32 v5, v5, v6
              v_mul_u32_u24 v5, 1040, v5
              v_and_b32 v6, 3, v1
              v_lshl_add_u32 v5, v6, 3, v5
              s_lshl_b32 s{sT5}, s{sT4}, 8
              v_add_u32 v5, s{sT5}, v5
              v_add_u32 v6, {64*1040}, v5
              v_lshlrev_b32 v7, 4, v0
              v_add_u32 v12, 4096, v7
              v_add_u32 v13, {L_PB}, v7
              s_mul_i32 s{sT5}, s{sT4}, {4*1040}
              s_add_u32 s{sT5}, s{sT5}, {L_QA}
              v_lshl_add_u32 v8, v0, 3, s{sT5}
              v_add_u32 v9, 1040, v8
              v_add_u32 v10, 2080, v8
              v_add_u32 v11, 3120, v8
              s_lshl_b32 s{sT5}, s{sJ}, 15
              s_lshl_b32 s{sU}, s{sT4}, 13
              s_add_u32 s{sT5}, s{sT5}, s{sU}
              s_add_u32 s{sT5}, s{sT5}, {H2}''')
        self.get_tag()
        e(f'v_mov_b32 v15, s{sTAG}')
        self.spin_init()
        def loads():
            for i in range(8):
                e(f'buffer_load_dwordx4 {vr(G+4*i)}, v{7 if i < 4 else 12}, {srd(sWS)}, s{sT5} offen offset:{1024*(i&3)} sc1')
        def trreads(a):
            for s in range(4):
                for T in range(8):
                    e(f'ds_read_b64_tr_b16 {vr(V+16*T+4*s+2*a,2)}, v{5 if s < 2 else 6} offset:{(32*(s&1)+16*a)*1040+32*T}')
        e('s_barrier')
        loads()
        self.stamp(2)
        trreads(0)
        chk = self.lab('L_chk'); top = self.lab('L_poll')
        e(f's_branch {chk}\n{top}:')
        loads()
        e(f'{chk}:')
        for i in range(8):
            e(f's_waitcnt vmcnt({7-i})')
            e(f'v_bitop3_b32 v{P+i}, v{G+4*i+1}, v{G+4*i+3}, v15 bitop3:0x7e')
            e(f'ds_write2_b32 v{8+(i>>1)}, v{G+4*i}, v{G+4*i+2} offset0:{128*(i&1)} offset1:{128*(i&1)+1}')
        e(f'''v_or3_b32 v{P}, v{P}, v{P+1}, v{P+2}
              v_or3_b32 v{P+3}, v{P+3}, v{P+4}, v{P+5}
              v_or3_b32 v{P}, v{P}, v{P+6}, v{P+7}
              v_or_b32 v{P}, v{P}, v{P+3}
              v_cmp_ne_u32 vcc, 0, v{P}
              s_waitcnt lgkmcnt(0)''')
        self.spin_back(top, self.c.sl_h2)
        self.stamp(3)
        e('s_barrier')
        self.stamp(4)
        trreads(1)
        e('''s_barrier
             s_waitcnt lgkmcnt(0)
             s_barrier''')
        for s in range(4): e(f'ds_read_b128 {vr(P+4*s)}, v13 offset:{1024*s}')
        self.stamp(6)
        def cvt(Tp):
            for r in range(4):
                e(f'v_cvt_pk_bf16_f32 v{G+4*r+Tp}, v{DD+8*Tp+r}, v{DD+8*Tp+4+r}')
        for Tp in range(4):
            for s in range(4):
                if Tp == 0: e(f's_waitcnt lgkmcnt({3-s})')
                for T in (2*Tp, 2*Tp+1):
                    e(f'v_mfma_f32_16x16x32_bf16 {vr(DD+4*T)}, {vr(P+4*s)}, {vr(V+16*T+4*s)}, {vr(DD+4*T) if s else 0}')
            if Tp: cvt(Tp-1)
        e('s_nop 3')
        for r in range(4):
            e(f'''v_cvt_pk_bf16_f32 v{G+4*r+3}, v{DD+24+r}, v{DD+28+r}
                  buffer_store_dwordx4 {vr(G+4*r)}, v4, {srd(sWS)}, s{sT0+r} offen sc1''')
        self.stamp(7)
        e(f'''L_X_D:
              s_barrier
              s_cmp_ge_u32 s{sW}, 6
              s_cbranch_scc1 L_end
              s_mov_b32 s{sU}, s{sY}''')
        self.stamp(8)
        self.s4_issue()

    def dump(self):
        e = self.e
        e(f'''L_dump:
              s_memrealtime s[{sST+30}:{sST+31}]
              s_waitcnt lgkmcnt(0)
              {f's_mov_b32 s{sST+2}, s92' if self.c.bwtest else ''}
              s_lshl_b32 s{sT0}, s2, 3
              s_add_u32 s{sT0}, s{sT0}, s{sW}
              s_lshl_b32 s{sT0}, s{sT0}, 6
              s_add_u32 s{sT0}, s{sT0}, {DBG}
              v_mov_b32 v4, 0
              s_mov_b64 exec, 1''')
        for i in range(16):
            e(f'''v_mov_b32 v5, s{sST+2*i}
                  buffer_store_dword v5, v4, {srd(sWS)}, s{sT0} offen offset:{4*i}''')
        if self.c.hold:
            c = self.c
            e(f'''s_sub_u32 s{sT0}, s{sST+2*c.hi}, s{sST}
                  s_cmp_eq_u32 s{sST+2*c.hi}, 0
                  s_cselect_b32 s{sT0}, 0, s{sT0}
                  s_lshr_b32 s{sT1}, s2, 3
                  s_cmp_lt_u32 s{sT1}, {c.hy0}
                  s_cbranch_scc1 L_exit
                  s_cmp_ge_u32 s{sT1}, {c.hy1}
                  s_cbranch_scc1 L_exit
                  s_cmp_lt_u32 s{sW}, {c.hw0}
                  s_cbranch_scc1 L_exit
                  s_cmp_ge_u32 s{sW}, {c.hw1}
                  s_cbranch_scc1 L_exit
                  s_cmp_lg_u32 s{sXC}, {c.hx if c.hx >= 0 else f's{sXC}'}
                  s_cbranch_scc1 L_exit
                  s_min_u32 s{sT0}, s{sT0}, 10000
                  s_mul_i32 s{sT0}, s{sT0}, {c.hk}
                  s_add_u32 s{sT0}, s{sT0}, {c.hold}
                  L_hold:
                  s_sleep 4
                  s_memrealtime s[{sT2}:{sT3}]
                  s_waitcnt lgkmcnt(0)
                  s_sub_u32 s{sT2}, s{sT2}, s{sST}
                  s_cmp_lt_u32 s{sT2}, s{sT0}
                  s_cbranch_scc1 L_hold''')
        e('s_endpgm')

    def build(self):
        e = self.e
        if self.c.stamps:
            for i in range(1, 16): e(f's_mov_b32 s{sST+2*i}, 0')
        self.prologue()
        self.s1a()
        self.y_rest()
        self.s1b()
        self.s3a()
        self.s3b()
        self.fin()
        self.x_path()
        self.s4()
        if self.c.stamps: self.dump()
        e('''L_exit:
             s_endpgm
             L_codeend:''')
        body = self.L
        nh = hazard.check(body)
        hdr = open('cdna_kernels/' + KN[:-7] + '.s.ref').read().split('; Override')[0]
        out = hdr + f'''; Single persistent launch, one workgroup per CU; generated by a script of my own (stage map in the labels).
; @launch grid=(256,1,1) block=(512,1,1) lds={LDS_SIZE}
.amdgcn_target "amdgcn-amd-amdhsa--gfx950"
.text
.globl {KN}
.p2align 8
.type {KN},@function
{KN}:
''' + '\n'.join(body) + f'''
.section .rodata,"a"
.p2align 6
.amdhsa_kernel {KN}
  .amdhsa_next_free_vgpr 256
  .amdhsa_next_free_sgpr {96 if self.c.stamps else 64}
  .amdhsa_accum_offset 256
  .amdhsa_group_segment_fixed_size 0
  .amdhsa_kernarg_size 96
  .amdhsa_user_sgpr_count 2
  .amdhsa_user_sgpr_kernarg_segment_ptr 1
  .amdhsa_system_sgpr_workgroup_id_x 1
.end_amdhsa_kernel
'''
        return out, nh

if __name__ == '__main__':
    cfg = Cfg()
    out = sys.argv[1]
    for a in sys.argv[2:]:
        k, v = a.split('=')
        setattr(cfg, k, type(getattr(Cfg, k))(int(v, 0)))
    s, nh = Gen(cfg).build()
    open(out, 'w').write(s)
    print('written', out, 'hazards', nh)
```

```python
import sys, struct, math
import hazard

KN = 'sequential_preLN__compressed_kv_cla__dense_activation_silu__decode_kernel'

class Cfg:
    stamps = False
    nt = True
    x_n = 16
    s1b_n = 4
    stagger = True
    prefetch_code = True
    spin = 0x10000
    sl_h1 = 0
    sl_h2 = 2
    sl_st = 2
    sl_pay = 0
    sl_h4 = 0
    sl_h56 = 1
    sl_h7 = 0
    x_tagfirst = 1
    x_sleep = 0
    hold = 0
    hk = 0
    hi = 15
    hy0 = 0
    hy1 = 32
    hw0 = 0
    hw1 = 8
    hx = -1

H1 = 0x1000; H2 = 0x21000; ST = 0x90000; H4 = 0x39000; H56 = 0x49000; H7 = 0x4C000
STS = 640
PAY = 0x100000; DBG = 0x300000; WS_SIZE = 0x340000
OOB = 0x7ff00000
L_CKV = 0; L_QA = 133120; L_PB = 149760
L_WO = 0; L_W1 = 0; L_W2 = 38016; L_WUK = 77824; L_WUV = 110592
L_MX = 153856; L_CB = 153984; L_EX = 155264; L_CS = 156288; L_LS = 157312; L_ML = 158592
LDS_SIZE = 158720

sX, sCKV, sWQ, sWUK, sWUV, sWO, sW1, sW2, sOUT, sWS = 4, 8, 12, 16, 20, 24, 28, 32, 36, 40
sTAG, sW, sXC, sY, sH, sJ = 44, 45, 46, 47, 48, 49
sT0, sT1, sT2, sT3, sT4, sT5 = 50, 51, 52, 53, 54, 55
sU, sCNT, sSPIN = 56, 57, 58
sST = 60

def f2u(x): return struct.unpack('<I', struct.pack('<f', x))[0]
def srd(b): return f's[{b}:{b+3}]'
def vr(b, n=4): return f'v[{b}:{b+n-1}]' if n > 1 else f'v{b}'

class Gen:
    def __init__(self, cfg):
        self.c = cfg; self.L = []; self.nlab = 0; self.stampnames = {}
    def e(self, s):
        for ln in s.strip('\n').split('\n'):
            ln = ln.strip()
            if ln: self.L.append(('' if ln.endswith(':') else '    ') + ln)
    def lab(self, p='L'):
        self.nlab += 1; return f'{p}_{self.nlab}'
    def stamp(self, i, name=None):
        if self.c.stamps:
            self.e(f's_memrealtime s[{sST+2*i}:{sST+2*i+1}]')
    def end(self):
        if self.c.stamps: self.e('s_branch L_dump')
        else: self.e('s_endpgm')
    @property
    def NT(self): return ' nt' if self.c.nt else ''
    def spin_init(self): self.e(f's_mov_b32 s{sSPIN}, {self.c.spin}')
    def spin_back(self, top, sleep=0):
        done = self.lab('L_ok')
        self.e(f'''s_cbranch_vccz {done}
                   {f's_sleep {sleep}' if sleep else ''}
                   s_sub_u32 s{sSPIN}, s{sSPIN}, 1
                   s_cbranch_scc0 {top}
                   {done}:''')
    def dma_loop(self, n, vaddr, srdb, sOff, dOff, dM0):
        top = self.lab('L_dma')
        self.e(f'''s_mov_b32 s{sCNT}, {n-1}
                   {top}:
                   buffer_load_dwordx4 v{vaddr}, {srd(srdb)}, s{sOff} offen{self.NT} lds
                   s_add_u32 m0, m0, {dM0}
                   s_add_u32 s{sOff}, s{sOff}, {dOff}
                   s_sub_u32 s{sCNT}, s{sCNT}, 1
                   s_cbranch_scc0 {top}''')
    def swap_reduce(self, v0, v1, v2, v3):
        self.e(f'''s_nop 1
                   v_permlane32_swap_b32 v{v0}, v{v2}
                   v_permlane32_swap_b32 v{v1}, v{v3}
                   v_add_f32 v{v0}, v{v0}, v{v2}
                   v_add_f32 v{v1}, v{v1}, v{v3}
                   s_nop 1
                   v_permlane16_swap_b32 v{v0}, v{v1}
                   v_add_f32 v{v0}, v{v0}, v{v1}''')
    def allreduce(self, op, v, t, ks=(1, 2, 4, 8)):
        for k in ks:
            self.e(f'''s_nop 1
                       {op}_dpp v{v}, v{v}, v{v} row_ror:{k} row_mask:0xf bank_mask:0xf''')
        for sw in ('16', '32'):
            self.e(f'''v_mov_b32 v{t}, v{v}
                       s_nop 1
                       v_permlane{sw}_swap_b32 v{v}, v{t}
                       {op} v{v}, v{v}, v{t}''')

    def prologue(self):
        e = self.e
        e(f'''s_cmp_ge_u32 s2, 256
              s_cbranch_scc1 L_exit''')
        self.stamp(0)
        for b, off in ((sX, 0), (sWQ, 16), (sCKV, 8), (sWUK, 24), (sWS, 88), (sWUV, 32), (sWO, 40)):
            e(f's_load_dwordx2 s[{b}:{b+1}], s[0:1], {off}')
        e('''v_lshrrev_b32 v1, 6, v0
             v_and_b32 v0, 63, v0''')
        e(f'v_readfirstlane_b32 s{sW}, v1')
        e('''v_and_b32 v1, 15, v0
             v_lshrrev_b32 v2, 4, v0''')
        for b, sz in ((sX, 1152), (sCKV, 8192*1024), (sWQ, 576*8192), (sWUK, 512*8192), (sWUV, 512*8192),
                      (sWO, 4096*1152), (sW1, 576*9216), (sW2, 4608*1152), (sOUT, 1152), (sWS, WS_SIZE)):
            e(f'''s_mov_b32 s{b+2}, {sz}
                  s_mov_b32 s{b+3}, 0x20000''')
        e(f'''s_and_b32 s{sXC}, s2, 7
              s_lshr_b32 s{sY}, s2, 3
              s_lshr_b32 s{sH}, s{sY}, 2
              s_lshl_b32 s{sT0}, s{sXC}, 2
              s_add_u32 s{sH}, s{sH}, s{sT0}
              s_and_b32 s{sJ}, s{sY}, 3
              s_waitcnt lgkmcnt(0)''')
        for b, off in ((sW1, 56), (sW2, 64), (sOUT, 72)):
            e(f's_load_dwordx2 s[{b}:{b+1}], s[0:1], {off}')
        e(f'''s_load_dword s{sTAG}, s[{sWS}:{sWS+1}], 0
              s_cmp_ge_u32 s{sY}, 16
              s_cbranch_scc1 L_X
              s_cmp_lg_u32 s{sW}, 0
              s_cbranch_scc1 L_Y_not0''')
    def get_tag(self):
        self.e(f'''s_waitcnt lgkmcnt(0)
                   s_or_b32 s{sTAG}, s{sTAG}, 0x40004000
                   s_add_u32 s{sTAG}, s{sTAG}, 1
                   s_and_b32 s{sTAG}, s{sTAG}, 0xbfffbfff''')

    def s1a(self):
        e = self.e
        XS, X1, XR, SEL, A0, D, WQ = 8, 12, 16, 40, 48, 56, 112
        e(f'''v_lshlrev_b32 v5, 4, v0
              v_lshlrev_b32 v6, 2, v0
              s_mul_i32 s{sT0}, s{sJ}, 288
              v_mul_u32_u24 v4, 72, v2
              buffer_load_dwordx4 {vr(XS)}, v5, {srd(sX)}, 0 offen
              buffer_load_dword v{X1}, v6, {srd(sX)}, 0 offen offset:1024''')
        for k in range(4):
            e(f'buffer_load_dwordx4 {vr(XR+4*k)}, v4, {srd(sX)}, s{sT0} offen offset:{16*k}')
        e(f'buffer_load_dwordx2 {vr(XR+16,2)}, v4, {srd(sX)}, s{sT0} offen offset:64')
        e(f'''v_mul_u32_u24 v7, {36*8192}, v2
              v_lshl_add_u32 v7, v1, 4, v7
              s_mul_i32 s{sT1}, s{sJ}, {144*8192}
              s_lshl_b32 s{sT2}, s{sH}, 8
              s_add_u32 s{sT1}, s{sT1}, s{sT2}''')
        for t in range(36):
            e(f'buffer_load_dwordx4 {vr(WQ+4*t)}, v7, {srd(sWQ)}, s{sT1} offen{self.NT}')
            if t < 35: e(f's_addk_i32 s{sT1}, 8192')
        e('s_barrier')
        self.stamp(1)
        e(f'''v_and_b32 v34, 2, v1
              v_cmp_ne_u32 vcc, 0, v34
              v_mov_b32 v35, 0x0504
              v_mov_b32 v36, 0x0706
              v_mov_b32 v37, 0x0100
              v_cndmask_b32 v35, v35, v37, vcc
              v_cndmask_b32 v36, v36, v37, vcc
              v_and_b32 v34, 1, v1
              v_lshlrev_b32 v34, 4, v34
              v_xor_b32 v35, 0x0c0c, v35
              v_xor_b32 v36, 0x0c0c, v36
              v_lshlrev_b32 v35, v34, v35
              v_lshlrev_b32 v36, v34, v36
              v_xor_b32 v35, 0x0c0c0c0c, v35
              v_xor_b32 v36, 0x0c0c0c0c, v36
              v_mov_b32 v37, 0x0c0c0c0c
              v_lshrrev_b32 v34, 2, v1''')
        for rho in range(4):
            e(f'''v_cmp_eq_u32 vcc, {rho}, v34
                  s_nop 1
                  v_cndmask_b32 v{SEL+rho}, v37, v35, vcc
                  v_cndmask_b32 v{SEL+4+rho}, v37, v36, vcc''')
        e(f'''v_mov_b32 v38, 0x3f803f80
              v_mov_b32 v34, 0
              v_mov_b32 v35, 0''')
        e(f'''s_lshl_b32 s{sT2}, s{sH}, 12
              s_lshl_b32 s{sT3}, s{sJ}, 10
              s_add_u32 s{sT2}, s{sT2}, s{sT3}
              s_add_u32 s{sT2}, s{sT2}, {H1}''')
        e('s_waitcnt vmcnt(41)')
        for k in range(5):
            e(f'''v_dot2_f32_bf16 v34, v{XS+k}, v38, v34
                  v_dot2_f32_bf16 v35, v{XS+k}, v{XS+k}, v35''')
        e('s_nop 2')
        for k in (1, 2, 4, 8):
            e(f'''v_add_f32_dpp v34, v34, v34 row_ror:{k} row_mask:0xf bank_mask:0xf
                  v_add_f32_dpp v35, v35, v35 row_ror:{k} row_mask:0xf bank_mask:0xf
                  s_nop 0''')
        for sw in ('16', '32'):
            e(f'''v_mov_b32 v36, v34
                  v_mov_b32 v37, v35
                  s_nop 0
                  v_permlane{sw}_swap_b32 v34, v36
                  v_permlane{sw}_swap_b32 v35, v37
                  v_add_f32 v34, v34, v36
                  v_add_f32 v35, v35, v37''')
        cs = math.log2(math.e) / math.sqrt(128.0)
        e(f'''v_mul_f32 v34, {hex(f2u(1/576))}, v34
              v_mul_f32 v35, {hex(f2u(1/576))}, v35
              v_fma_f32 v35, -v34, v34, v35
              v_add_f32 v35, {hex(f2u(1e-5))}, v35
              v_rsq_f32 v35, v35
              s_waitcnt vmcnt(36)
              v_mul_f32 v35, {hex(f2u(cs))}, v35''')
        def perm(t):
            for rho in range(4):
                e(f'v_perm_b32 v{A0+4*(t&1)+rho}, v{XR+(t>>1)}, v38, v{SEL+4*(t&1)+rho}')
        perm(0)
        for t in range(36):
            if t < 35: perm(t+1)
            else: self.get_tag()
            e(f's_waitcnt vmcnt({35-t})')
            e(f'v_mfma_f32_16x16x32_bf16 {vr(D)}, {vr(A0+4*(t&1))}, {vr(WQ+4*t)}, {vr(D) if t else 0}')
        self.stamp(2)
        e(f'''v_mov_b32 v62, s{sTAG}
              v_mov_b32 v63, s{sTAG}
              s_nop 5
              v_fma_f32 v60, -v34, v{D+2}, v{D}
              v_fma_f32 v61, -v34, v{D+3}, v{D+1}
              v_mul_f32 v60, v60, v35
              v_mul_f32 v61, v61, v35
              buffer_store_dwordx4 v[60:63], v5, {srd(sWS)}, s{sT2} offen sc1''')
        self.stamp(3)
        e('s_branch L_Y_lo')

    def y_rest(self):
        e = self.e
        e(f'''L_Y_not0:
              s_cmp_ge_u32 s{sW}, 4
              s_cbranch_scc1 L_S1b''')
        if self.c.prefetch_code:
            sk = self.lab('L_nopf')
            e(f'''s_cmp_lg_u32 s{sW}, 1
                  s_cbranch_scc1 {sk}
                  s_getpc_b64 s[{sT0}:{sT1}]
                  L_pc:
                  s_sub_u32 s{sT0}, s{sT0}, L_pc-{KN}
                  s_subb_u32 s{sT1}, s{sT1}, 0
                  v_lshlrev_b32 v4, 7, v0
                  v_min_u32 v5, L_codeend-{KN}-4, v4
                  global_load_dword v250, v5, s[{sT0}:{sT1}]
                  v_add_u32 v4, 8192, v4
                  v_min_u32 v5, L_codeend-{KN}-4, v4
                  global_load_dword v251, v5, s[{sT0}:{sT1}]
                  {sk}:''')
        e('s_barrier')
        self.get_tag()
        e('s_branch L_Y_lo')

    def s1b(self):
        e = self.e
        W, G, V, D = 16, 48, 64, 80
        e('L_S1b:')
        sk = self.lab('L_noclr')
        e(f'''s_cmp_lg_u32 s{sW}, 4
              s_cbranch_scc1 {sk}
              s_lshl_b32 s{sT0}, s{sH}, 2
              s_add_u32 s{sT0}, s{sT0}, s{sJ}
              s_lshl_b32 s{sT0}, s{sT0}, 9
              s_add_u32 s{sT0}, s{sT0}, {H4}
              s_mul_i32 s{sT1}, s{sXC}, 1152
              s_lshl_b32 s{sT2}, s{sY}, 7
              s_add_u32 s{sT1}, s{sT1}, s{sT2}
              s_add_u32 s{sT1}, s{sT1}, {H56-512}
              s_cmp_lt_u32 s{sY}, 9
              s_cselect_b32 s{sT1}, s{sT1}, {OOB}
              v_mov_b32 v4, s{sT0}
              v_mov_b32 v5, s{sT1}
              v_mov_b32 v6, {OOB}
              v_cmp_gt_u32 vcc, 40, v0
              v_mov_b32 v8, -1
              v_mov_b32 v9, -1
              v_cndmask_b32 v5, v6, v5, vcc
              v_cmp_gt_u32 vcc, 32, v0
              v_mov_b32 v10, -1
              v_mov_b32 v11, -1
              v_cndmask_b32 v4, v5, v4, vcc
              v_lshl_add_u32 v4, v0, 4, v4
              buffer_store_dwordx4 v[8:11], v4, {srd(sWS)}, 0 offen sc1
              {sk}:''')
        e(f'''s_sub_u32 s{sT4}, s{sW}, 4
              v_lshrrev_b32 v4, 5, v0
              v_xor_b32 v4, v4, v1
              v_lshlrev_b32 v4, 4, v4
              v_lshl_add_u32 v4, v2, 13, v4
              s_lshl_b32 s{sT0}, s{sJ}, 2
              s_add_u32 s{sT0}, s{sT0}, s{sT4}
              s_lshl_b32 s{sT5}, s{sT0}, 7
              s_lshl_b32 s{sT0}, s{sT0}, 18
              s_lshl_b32 s{sT1}, s{sH}, 8
              s_add_u32 s{sT0}, s{sT0}, s{sT1}
              s_lshl_b32 s{sT1}, s{sT4}, 13
              s_add_u32 s{sT1}, s{sT1}, {L_WUK}
              s_mov_b32 m0, s{sT1}''')
        e(f'''v_and_b32 v5, 1, v2
              v_lshlrev_b32 v5, 1, v5
              v_xor_b32 v5, v5, v2
              v_lshlrev_b32 v5, 2, v5''')
        e('s_barrier')
        for i in range(8):
            if i: e(f'v_xor_b32 v6, {32*i}, v4')
            e(f'buffer_load_dwordx4 v{6 if i else 4}, {srd(sWUK)}, s{sT0} offen{self.NT} lds')
            if i < 7:
                e(f'''s_add_u32 m0, m0, 1024
                      s_add_u32 s{sT0}, s{sT0}, 32768''')
        self.stamp(1)
        e(f'''v_xor_b32 v6, v5, v1
              v_lshlrev_b32 v6, 4, v6
              v_lshl_add_u32 v6, v1, 9, v6
              v_add_u32 v8, s{sT1}, v6''')
        for s in range(1, 4): e(f'v_xor_b32 v{8+s}, {16*s}, v8')
        e(f'''v_lshrrev_b32 v6, 2, v1
              v_lshlrev_b32 v6, 4, v6
              v_and_b32 v7, 3, v1
              v_add3_u32 v6, v6, v5, v7
              v_lshlrev_b32 v12, 4, v6
              s_lshl_b32 s{sT2}, s{sH}, 12
              s_add_u32 s{sT2}, s{sT2}, {H1}''')
        e(f'''v_lshlrev_b32 v13, 3, v0
              v_mov_b32 v6, {OOB}
              v_cmp_gt_u32 vcc, 16, v0
              s_lshl_b32 s{sT3}, s{sH}, 11
              s_add_u32 s{sT3}, s{sT3}, s{sT5}
              s_add_u32 s{sT3}, s{sT3}, {H2}
              v_cndmask_b32 v13, v6, v13, vcc''')
        self.get_tag()
        e(f'v_mov_b32 v15, s{sTAG}')
        self.spin_init()
        def loads():
            for p in range(4):
                e(f'buffer_load_dwordx4 {vr(G+4*p)}, v12, {srd(sWS)}, s{sT2} offen offset:{1024*p} sc1')
        e(f's_waitcnt vmcnt({self.c.s1b_n})')
        loads()
        e('s_waitcnt vmcnt(4)')
        self.stamp(2)
        for t in range(2):
            for s in range(4):
                e(f'ds_read_b128 {vr(W+16*t+4*s)}, v{8+s} offset:{256*t}')
        chk = self.lab('L_chk'); top = self.lab('L_poll')
        e(f's_branch {chk}\n{top}:')
        loads()
        e(f'''{chk}:
              s_waitcnt vmcnt(0)
              v_bitop3_b32 v6, v{G+2}, v{G+6}, v15 bitop3:0x7e
              v_bitop3_b32 v7, v{G+10}, v{G+14}, v15 bitop3:0x7e
              v_or_b32 v6, v6, v7
              v_cmp_ne_u32 vcc, 0, v6''')
        self.spin_back(top, self.c.sl_h1)
        self.stamp(3)
        e(f'''v_pk_add_f32 {vr(G,2)}, {vr(G,2)}, {vr(G+4,2)}
              v_pk_add_f32 {vr(G+8,2)}, {vr(G+8,2)}, {vr(G+12,2)}
              v_pk_add_f32 {vr(G,2)}, {vr(G,2)}, {vr(G+8,2)}
              v_cvt_pk_bf16_f32 v6, v{G}, v{G+1}
              s_waitcnt lgkmcnt(0)
              s_nop 0''')
        def bc(s):
            for u in range(4):
                e(f'v_mov_b32_dpp v{V+4*s+u}, v6 row_newbcast:{4*u+s} row_mask:0xf bank_mask:0xf')
        bc(0)
        for s in range(4):
            if s < 3: bc(s+1)
            for t in range(2):
                e(f'v_mfma_f32_16x16x32_bf16 {vr(D+4*t)}, {vr(V+4*s)}, {vr(W+16*t+4*s)}, {vr(D+4*t) if s else 0}')
        e(f'''s_nop 7
              v_cvt_pk_bf16_f32 v14, v{D}, v{D+4}
              buffer_store_dwordx2 v[14:15], v13, {srd(sWS)}, s{sT3} offen sc1''')
        self.stamp(4)
        e('s_barrier')
        e(f'''s_cmp_lt_u32 s{sY}, 9
              s_cbranch_scc1 L_S3b
              s_cmp_lt_u32 s{sY}, 11
              s_cbranch_scc1 L_Yhi_S4
              s_cmp_ge_u32 s{sY}, 14
              s_cbranch_scc1 L_end
              s_cmp_eq_u32 s{sW}, 4
              s_cbranch_scc1 L_FIN
              L_end:''')
        self.end()
        e(f'''L_Yhi_S4:
              s_cmp_ge_u32 s{sW}, 6
              s_cbranch_scc1 L_end
              s_add_u32 s{sU}, s{sY}, 7''')
        self.s4_issue()
        e('''s_barrier
             s_branch L_S4''')

    def s3a(self):
        e = self.e
        B, PL, A, D, F, MK = 16, 48, 64, 80, 88, 104
        e('L_Y_lo:')
        e(f'''v_lshrrev_b32 v4, 2, v0
              v_and_b32 v5, 3, v0
              v_lshlrev_b32 v4, 13, v4
              v_lshl_add_u32 v4, v5, 4, v4
              s_lshl_b32 s{sT0}, s{sJ}, 20
              s_lshl_b32 s{sT1}, s{sH}, 8
              s_add_u32 s{sT0}, s{sT0}, s{sT1}
              s_lshl_b32 s{sT1}, s{sW}, 6
              s_add_u32 s{sT0}, s{sT0}, s{sT1}
              s_mul_i32 s{sT1}, s{sW}, 10240
              s_add_u32 s{sT1}, s{sT1}, {L_WUV}''')
        e('s_barrier')
        self.stamp(4)
        for j in range(8):
            e(f'''s_add_u32 m0, s{sT1}, {j*1280 + (0, 32, 128, 160)[j & 3]}
                  s_nop 0
                  buffer_load_dwordx4 v4, {srd(sWUV)}, s{sT0} offen{self.NT} lds''')
            if j < 7: e(f's_add_u32 s{sT0}, s{sT0}, {16*8192}')
        e(f'''v_lshrrev_b32 v6, 2, v1
              v_mul_u32_u24 v7, 1280, v6
              v_and_b32 v8, 1, v6
              v_lshl_add_u32 v7, v8, 5, v7
              v_lshrrev_b32 v8, 1, v6
              v_lshl_add_u32 v7, v8, 7, v7
              v_lshl_add_u32 v7, v2, 6, v7
              v_lshl_add_u32 v7, v5, 3, v7
              v_add_u32 v7, s{sT1}, v7''')
        sk = self.lab('L_nos4')
        e(f'''s_sub_u32 s{sT2}, s{sY}, 9
              s_cmp_ge_u32 s{sT2}, 2
              s_cbranch_scc1 {sk}
              s_add_u32 s{sU}, s{sY}, 7''')
        self.s4_issue()
        e(f'{sk}:')
        e(f'''v_and_b32 v8, 1, v1
              v_lshlrev_b32 v8, 4, v8
              v_mov_b32 v9, 0xffff
              v_lshlrev_b32 v9, v8, v9
              v_bfe_u32 v8, v1, 1, 2''')
        for rho in range(4):
            e(f'''v_cmp_eq_u32 vcc, {rho}, v8
                  s_nop 1
                  v_cndmask_b32 v{MK+rho}, 0, v9, vcc''')
        e(f'''v_and_b32 v8, 12, v1
              v_add_u32 v8, v8, v2
              v_mul_u32_u24 v8, {STS}, v8
              s_lshl_b32 s{sT2}, s{sH}, 4
              s_mul_i32 s{sT3}, s{sW}, {16*STS}
              s_add_u32 s{sT2}, s{sT2}, s{sT3}
              s_add_u32 s{sT2}, s{sT2}, {ST}
              v_lshlrev_b32 v9, 4, v0
              s_lshl_b32 s{sT3}, s{sH}, 2
              s_add_u32 s{sT3}, s{sT3}, s{sJ}
              s_lshl_b32 s{sT3}, s{sT3}, 2
              s_add_u32 s{sT3}, s{sT3}, s{sW}
              s_lshl_b32 s{sT4}, s{sT3}, 7
              s_add_u32 s{sT4}, s{sT4}, {H4}
              s_lshl_b32 s{sT3}, s{sT3}, 12
              s_add_u32 s{sT3}, s{sT3}, {PAY}
              s_lshl_b32 s{sT5}, s{sW}, 2
              s_add_u32 s{sT5}, s{sT5}, {L_ML}
              v_mov_b32 v10, s{sT5}
              v_mov_b32 v3, {L_ML}
              s_mul_i32 s{sT5}, s{sW}, 320
              s_add_u32 s{sT5}, s{sT5}, {L_CB}
              v_and_b32 v11, 1, v2
              v_lshlrev_b32 v11, 3, v11
              v_lshl_add_u32 v11, v1, 4, v11
              v_add_u32 v11, s{sT5}, v11
              v_mul_u32_u24 v12, 320, v5
              v_lshl_add_u32 v12, v2, 4, v12
              v_add_u32 v12, {L_CB}, v12
              v_lshlrev_b32 v13, 2, v0
              v_mov_b32 v14, {OOB}
              v_cmp_gt_u32 vcc, 16, v0
              s_waitcnt vmcnt(0)
              v_mov_b32 v15, -1
              v_cndmask_b32 v13, v14, v13, vcc''')
        self.stamp(5)
        for t in range(2):
            for s in range(4):
                for a in range(2):
                    e(f'ds_read_b64_tr_b16 {vr(B+16*t+4*s+2*a,2)}, v7 offset:{a*5120+s*256+t*32}')
        self.spin_init()
        top = self.lab('L_poll')
        e(f'''{top}:
              buffer_load_dwordx4 {vr(F)}, v8, {srd(sWS)}, s{sT2} offen sc1
              s_waitcnt vmcnt(0)
              v_cmp_ne_u32 vcc, s{sTAG}, v{F+2}''')
        self.spin_back(top, self.c.sl_st)
        def loads():
            for t in range(4):
                e(f'buffer_load_dwordx4 {vr(PL+4*t)}, v9, {srd(sWS)}, s{sT3} offen offset:{1024*t} sc1')
        loads()
        self.stamp(6)
        e(f'v_mov_b32 v{F+7}, v{F}')
        self.allreduce('v_max_f32', F+7, F+5, (4, 8))
        e(f'''v_sub_f32 v{F+4}, v{F}, v{F+7}
              v_exp_f32 v{F+4}, v{F+4}
              s_nop 0
              v_cvt_pk_bf16_f32 v{F+4}, v{F+4}, v{F+4}
              v_and_b32 v{F+6}, 0xffff0000, v{F+4}
              v_mul_f32 v{F+6}, v{F+6}, v{F+1}''')
        for t in range(4):
            for rho in range(4):
                e(f'v_and_b32_dpp v{A+4*t+rho}, v{F+4}, v{MK+rho} row_newbcast:{4*t} row_mask:0xf bank_mask:0xf')
        self.allreduce('v_add_f32', F+6, F+5, (4, 8))
        e(f'ds_write2_b32 v10, v{F+7}, v{F+6} offset0:0 offset1:4')
        chk = self.lab('L_chk'); top = self.lab('L_poll')
        self.spin_init()
        e(f's_branch {chk}\n{top}:')
        loads()
        e(f'{chk}:')
        for t in range(4):
            p = PL + 4*t
            e(f's_waitcnt vmcnt({3-t})')
            e(f'v_mfma_f32_16x16x32_bf16 {vr(D)}, {vr(A+4*t)}, {vr(p)}, {vr(D) if t else 0}')
            if t == 0:
                e(f'''v_max3_u32 v6, v{p}, v{p+1}, v{p+2}
                      v_max_u32 v6, v6, v{p+3}''')
            else:
                e(f'''v_max3_u32 v6, v6, v{p}, v{p+1}
                      v_max3_u32 v6, v6, v{p+2}, v{p+3}''')
        e(f'v_cmp_eq_u32 vcc, v15, v6')
        self.spin_back(top, self.c.sl_pay)
        self.stamp(7)
        e(f'''s_nop 3
              v_cvt_pk_bf16_f32 v{D+4}, v{D}, v{D+1}
              v_cvt_pk_bf16_f32 v{D+5}, v{D+2}, v{D+3}
              ds_write_b64 v11, {vr(D+4,2)}
              s_waitcnt lgkmcnt(0)
              s_barrier''')
        for s in range(4):
            e(f'ds_read_b128 {vr(A+4*s)}, v12 offset:{64*s}')
            if s == 0:
                e(f'''ds_read_b128 {vr(F)}, v3
                      ds_read_b128 {vr(F+4)}, v3 offset:16''')
        fill = ['', f's_waitcnt lgkmcnt(2)\nv_max3_f32 v6, v{F}, v{F+1}, v{F+2}\nv_max_f32 v6, v6, v{F+3}',
                f'v_sub_f32 v{F}, v{F}, v6\nv_sub_f32 v{F+1}, v{F+1}, v6',
                f'v_sub_f32 v{F+2}, v{F+2}, v6\nv_sub_f32 v{F+3}, v{F+3}, v6\ns_waitcnt lgkmcnt(1)',
                f'v_exp_f32 v{F}, v{F}', f'v_exp_f32 v{F+1}, v{F+1}\ns_waitcnt lgkmcnt(0)', f'v_exp_f32 v{F+2}, v{F+2}', f'v_exp_f32 v{F+3}, v{F+3}']
        e('s_waitcnt lgkmcnt(5)')
        for s in range(4):
            for t in range(2):
                e(f'v_mfma_f32_16x16x32_bf16 {vr(D+4*t)}, {vr(A+4*s)}, {vr(B+16*t+4*s)}, {vr(D+4*t) if s else 0}')
                e(fill[2*s+t])
        e(f'''v_mul_f32 v6, v{F}, v{F+4}
              v_fmac_f32 v6, v{F+1}, v{F+5}
              v_fmac_f32 v6, v{F+2}, v{F+6}
              v_fmac_f32 v6, v{F+3}, v{F+7}
              v_rcp_f32 v6, v6
              v_mul_f32 v{D}, v{D}, v{F}
              v_fmac_f32 v{D}, v{D+1}, v{F+1}
              v_mul_f32 v{D+4}, v{D+4}, v{F}
              v_fmac_f32 v{D}, v{D+2}, v{F+2}
              v_fmac_f32 v{D+4}, v{D+5}, v{F+1}
              v_fmac_f32 v{D}, v{D+3}, v{F+3}
              v_fmac_f32 v{D+4}, v{D+6}, v{F+2}
              v_mul_f32 v{D}, v{D}, v6
              v_fmac_f32 v{D+4}, v{D+7}, v{F+3}
              v_mul_f32 v{D+4}, v{D+4}, v6
              v_cvt_pk_bf16_f32 v6, v{D}, v{D+4}
              buffer_store_dword v6, v13, {srd(sWS)}, s{sT4} offen sc1''')
        self.stamp(8)
        e(f'''s_sub_u32 s{sT2}, s{sY}, 9
              s_cmp_lt_u32 s{sT2}, 2
              s_cbranch_scc1 L_S4''')
        self.end()

    def s3b(self):
        e = self.e
        B, D, G = 16, 80, 144
        e('L_S3b:')
        e(f'''v_lshrrev_b32 v4, 3, v0
              v_mul_u32_u24 v4, 1152, v4
              v_and_b32 v5, 7, v0
              v_lshl_add_u32 v4, v5, 4, v4
              s_lshl_b32 s{sT0}, s{sXC}, 2
              s_add_u32 s{sT2}, s{sT0}, s{sT4}
              s_mul_i32 s{sT0}, s{sT2}, {128*1152}
              s_lshl_b32 s{sT1}, s{sY}, 7
              s_add_u32 s{sT0}, s{sT0}, s{sT1}
              s_mul_i32 s{sT1}, s{sT4}, 16640
              s_add_u32 m0, s{sT1}, {L_WO}''')
        self.dma_loop(16, 4, sWO, sT0, 8*1152, 1040)
        e(f'''v_bfe_u32 v5, v1, 2, 1
              v_lshl_add_u32 v5, v2, 1, v5
              v_mul_u32_u24 v5, 2080, v5
              v_lshrrev_b32 v6, 3, v1
              v_lshl_add_u32 v5, v6, 7, v5
              v_and_b32 v6, 3, v1
              v_lshl_add_u32 v5, v6, 3, v5
              v_add_u32 v5, s{sT1}, v5''')
        e(f'''v_lshrrev_b32 v7, 2, v1
              v_lshl_add_u32 v7, v7, 2, v2
              v_lshlrev_b32 v7, 7, v7
              v_lshl_add_u32 v7, v6, 4, v7
              s_lshl_b32 s{sT2}, s{sT2}, 11
              s_add_u32 s{sT2}, s{sT2}, {H4}''')
        e(f'''v_lshlrev_b32 v8, 2, v0
              s_lshl_b32 s{sT3}, s{sY}, 7
              s_cmp_eq_u32 s{sXC}, 0
              s_cselect_b32 s{sT5}, s{sT3}, 4096
              v_add_u32 v9, s{sT5}, v8
              buffer_load_dword v12, v9, {srd(sX)}, 0 offen
              s_lshl_b32 s{sT5}, s{sT4}, 8
              s_add_u32 s{sT5}, s{sT5}, {L_EX}
              v_add_u32 v9, s{sT5}, v8
              v_lshlrev_b32 v10, 3, v0
              v_and_b32 v10, 0xff, v10
              v_add_u32 v10, {L_EX}, v10
              v_mov_b32 v11, {OOB}
              v_cmp_gt_u32 vcc, 32, v0
              s_mul_i32 s{sT5}, s{sXC}, 1152
              s_add_u32 s{sT3}, s{sT3}, s{sT5}
              s_add_u32 s{sT3}, s{sT3}, {H56}
              v_cndmask_b32 v8, v11, v8, vcc
              v_mov_b32 v15, -1
              s_waitcnt vmcnt(0)
              v_and_b32 v13, 0xffff0000, v12
              v_lshlrev_b32 v12, 16, v12''')
        self.stamp(5)
        for T in range(4):
            for s in range(4):
                for a in range(2):
                    e(f'ds_read_b64_tr_b16 {vr(B+16*T+4*s+2*a,2)}, v5 offset:{(s>>1)*1040+(4*(s&1)+2*a)*128+T*32}')
        e('''s_waitcnt lgkmcnt(0)
             s_barrier''')
        self.stamp(6)
        self.spin_init()
        top = self.lab('L_poll')
        e(f'''{top}:
              buffer_load_dwordx4 {vr(G)}, v7, {srd(sWS)}, s{sT2} offen sc1
              s_waitcnt vmcnt(0)
              v_max3_u32 v6, v{G}, v{G+1}, v{G+2}
              v_max_u32 v6, v6, v{G+3}
              v_cmp_eq_u32 vcc, v15, v6''')
        self.spin_back(top, self.c.sl_h4)
        self.stamp(7)
        def red(T):
            d = D + 16*T
            e(f'''v_add_f32 v{d}, v{d}, v{d+5}
                  v_add_f32 v{d+10}, v{d+10}, v{d+15}
                  v_add_f32 v{d}, v{d}, v{d+10}''')
        for T in range(4):
            for s in range(4):
                e(f'v_mfma_f32_16x16x32_bf16 {vr(D+16*T+4*s)}, {vr(G)}, {vr(B+16*T+4*s)}, 0')
            if T >= 2: red(T-2)
        e('s_nop 0')
        red(2)
        e('s_nop 0')
        red(3)
        self.swap_reduce(D, D+16, D+32, D+48)
        e(f'''ds_write_b32 v9, v{D}
              s_waitcnt lgkmcnt(0)
              s_barrier
              s_cmp_lg_u32 s{sW}, 4
              s_cbranch_scc1 L_end
              ds_read2_b64 {vr(D)}, v10 offset0:0 offset1:32
              ds_read2_b64 {vr(D+4)}, v10 offset0:64 offset1:96
              s_waitcnt lgkmcnt(1)
              v_pk_add_f32 v[12:13], v[12:13], {vr(D,2)}
              v_pk_add_f32 v[12:13], v[12:13], {vr(D+2,2)}
              s_waitcnt lgkmcnt(0)
              v_pk_add_f32 {vr(D+4,2)}, {vr(D+4,2)}, {vr(D+6,2)}
              v_pk_add_f32 v[12:13], v[12:13], {vr(D+4,2)}
              v_cvt_pk_bf16_f32 v6, v12, v13
              buffer_store_dword v6, v8, {srd(sWS)}, s{sT3} offen sc1''')
        self.stamp(8)
        self.end()

    def s4_issue(self):
        e = self.e
        sk = self.lab('L_now1')
        e(f'''s_mul_i32 s{sT2}, s{sXC}, 18
              s_add_u32 s{sU}, s{sU}, s{sT2}
              s_cmp_ge_u32 s{sW}, 3
              s_cbranch_scc1 {sk}
              v_lshrrev_b32 v120, 2, v0
              v_mul_u32_u24 v120, 9216, v120
              v_and_b32 v121, 3, v0
              v_lshl_add_u32 v120, v121, 4, v120
              s_mul_i32 s{sT2}, s{sW}, {192*9216}
              s_lshl_b32 s{sT3}, s{sU}, 6
              s_add_u32 s{sT2}, s{sT2}, s{sT3}
              s_mul_i32 s{sT3}, s{sW}, {12*1056}
              s_add_u32 m0, s{sT3}, {L_W1}''')
        self.dma_loop(12, 120, sW1, sT2, 16*9216, 1056)
        e(f'{sk}:')
        for i in range(3):
            e(f'''v_add_u32 v120, {64*i}, v0
                  v_mul_u32_u24 v121, 5462, v120
                  v_lshrrev_b32 v121, 16, v121
                  v_mul_u32_u24 v121, {1152-192}, v121
                  v_lshl_add_u32 v{122+i}, v120, 4, v121''')
        e(f'''s_mul_i32 s{sT2}, s{sU}, {32*1152}
              s_mul_i32 s{sT3}, s{sW}, 192
              s_add_u32 s{sT2}, s{sT2}, s{sT3}
              s_mul_i32 s{sT3}, s{sW}, 6144
              s_add_u32 m0, s{sT3}, {L_W2}''')
        for i in range(6):
            if i == 3: e(f's_add_u32 s{sT2}, s{sT2}, {16*1152}')
            else: e('s_nop 0')
            e(f'buffer_load_dwordx4 v{122+i%3}, {srd(sW2)}, s{sT2} offen{self.NT} lds')
            if i < 5: e('s_add_u32 m0, m0, 1024')

    def clear_check(self, va, g):
        e = self.e
        top = self.lab('L_poll')
        self.spin_init()
        e(f'''v_lshlrev_b32 v{va}, 9, v0
              s_mov_b32 s{sT2}, {H2}
              s_mov_b32 s{sT3}, {H2+32768}
              v_mov_b32 v{g+4}, s{sTAG}
              {top}:
              buffer_load_dwordx2 {vr(g,2)}, v{va}, {srd(sWS)}, s{sT2} offen sc1
              buffer_load_dwordx2 {vr(g+2,2)}, v{va}, {srd(sWS)}, s{sT3} offen sc1
              s_waitcnt vmcnt(0)
              v_bitop3_b32 v{g}, v{g+1}, v{g+3}, v{g+4} bitop3:0x7e
              v_cmp_ne_u32 vcc, 0, v{g}''')
        self.spin_back(top)

    def s4(self):
        e = self.e
        B2, B1, ONE, Lr, GR, RS, D, A = 16, 40, 88, 92, 104, 108, 112, 128
        e('L_S4:')
        self.stamp(9)
        e(f'''v_lshrrev_b32 v4, 2, v1
              v_and_b32 v5, 3, v1
              v_lshl_add_u32 v6, v2, 3, v4
              v_mul_u32_u24 v6, 192, v6
              v_lshl_add_u32 v6, v5, 3, v6
              s_mul_i32 s{sT0}, s{sW}, 6144
              s_add_u32 s{sT0}, s{sT0}, {L_W2}
              v_add_u32 v6, s{sT0}, v6
              v_and_b32 v7, 7, v1
              v_lshl_add_u32 v7, v2, 3, v7
              v_lshlrev_b32 v7, 2, v7
              v_add_u32 v7, {L_EX}, v7
              v_mov_b32 v8, {L_EX}
              v_lshlrev_b32 v9, 4, v0
              v_mov_b32 v10, {OOB}
              v_cmp_gt_u32 vcc, 16, v0
              s_mul_i32 s{sT4}, s{sU}, 1536
              s_lshl_b32 s{sT0}, s{sW}, 8
              s_add_u32 s{sT4}, s{sT4}, s{sT0}
              s_add_u32 s{sT4}, s{sT4}, {H7}
              v_cndmask_b32 v9, v10, v9, vcc
              s_cmp_ge_u32 s{sW}, 3
              s_cbranch_scc1 L_S4_hi''')
        self.clear_check(10, Lr)
        self.stamp(10)
        e(f'''v_mul_u32_u24 v10, 1056, v2
              v_lshl_add_u32 v10, v4, 6, v10
              v_lshl_add_u32 v10, v5, 3, v10
              s_mul_i32 s{sT0}, s{sW}, {12*1056}
              s_add_u32 s{sT0}, s{sT0}, {L_W1}
              v_add_u32 v10, s{sT0}, v10''')
        for b in range(3):
            for s in range(2):
                for t in range(2):
                    for a in range(2):
                        e(f'ds_read_b64_tr_b16 {vr(B1+16*b+8*s+4*t+2*a,2)}, v10 offset:{4*b*1056+(8*s+4*a)*64+t*32}')
        def w2reads():
            for t in range(6):
                for a in range(2):
                    e(f'ds_read_b64_tr_b16 {vr(B2+4*t+2*a,2)}, v6 offset:{4*a*192+t*32}')
        w2reads()
        for k in range(4): e(f'v_mov_b32 v{ONE+k}, 0x3f803f80')
        e(f'''v_lshrrev_b32 v11, 1, v1
              v_mul_u32_u24 v11, 1152, v11
              v_and_b32 v12, 1, v1
              v_cmp_ne_u32 s[{sT2}:{sT3}], 0, v12
              v_lshl_add_u32 v12, v2, 1, v12
              v_lshl_add_u32 v11, v12, 4, v11
              s_mul_i32 s{sT1}, s{sW}, 384
              s_add_u32 s{sT1}, s{sT1}, {H56}
              s_lshl_b32 s{sT0}, s{sW}, 8
              s_add_u32 s{sT0}, s{sT0}, {L_EX}
              v_lshl_add_u32 v12, v0, 2, s{sT0}
              v_mov_b32 v15, -1
              s_waitcnt lgkmcnt(0)''')
        for b in range(3):
            for s in range(2):
                for t in range(2):
                    e(f'v_mfma_f32_16x16x32_bf16 {vr(D+4*t)}, {vr(ONE)}, {vr(B1+16*b+8*s+4*t)}, {vr(D+4*t) if (b or s) else 0}')
        e(f'''v_cmp_gt_u32 vcc, 16, v0
              s_nop 6
              v_cndmask_b32 v13, v{D+4}, v{D}, vcc
              ds_write_b32 v12, v13 offset:{L_CS-L_EX}
              s_waitcnt lgkmcnt(0)
              s_barrier''')
        def csread():
            e(f'''ds_read2st64_b32 v[{A}:{A+1}], v7 offset0:{(L_CS-L_EX)//256} offset1:{(L_CS-L_EX)//256+1}
                  ds_read_b32 v14, v7 offset:{L_CS-L_EX+512}
                  s_waitcnt lgkmcnt(0)
                  v_add_f32 v14, v14, v{A}
                  v_add_f32 v14, v14, v{A+1}''')
        csread()
        self.stamp(11)
        self.spin_init()
        top = self.lab('L_poll')
        e(f'{top}:')
        for b in range(3):
            e(f'buffer_load_dwordx4 {vr(Lr+4*b)}, v11, {srd(sWS)}, s{sT1} offen offset:{128*b} sc1')
        e(f'''s_waitcnt vmcnt(0)
              v_max3_u32 v13, v{Lr}, v{Lr+1}, v{Lr+2}''')
        for k in range(3, 11, 2):
            e(f'v_max3_u32 v13, v13, v{Lr+k}, v{Lr+k+1}')
        e(f'''v_max_u32 v13, v13, v{Lr+11}
              v_cmp_eq_u32 vcc, v15, v13''')
        self.spin_back(top, self.c.sl_h56)
        self.stamp(12)
        for b in range(3):
            e(f'v_mfma_f32_16x16x32_bf16 {vr(GR)}, {vr(Lr+4*b)}, {vr(Lr+4*b)}, {vr(GR) if b else 0}')
        for b in range(3):
            e(f'v_mfma_f32_16x16x32_bf16 {vr(RS)}, {vr(Lr+4*b)}, {vr(ONE)}, {vr(RS) if b else 0}')
        fill = [None]*12
        fill[4] = f'v_add_f32 v{GR}, v{GR}, v{GR+2}\nv_add_f32 v{GR+1}, v{GR+1}, v{GR+3}'
        fill[5] = f'v_cndmask_b32 v{GR}, v{GR}, v{GR+1}, s[{sT2}:{sT3}]\nv_add_f32 v{RS}, v{RS}, v{RS+1}'
        fill[6] = f'v_add_f32_dpp v{GR}, v{GR}, v{GR} row_ror:1 row_mask:0xf bank_mask:0xf\nv_add_f32 v{RS+2}, v{RS+2}, v{RS+3}'
        fill[7] = f'v_add_f32_dpp v{GR}, v{GR}, v{GR} row_ror:2 row_mask:0xf bank_mask:0xf\nv_add_f32 v{RS}, v{RS}, v{RS+2}'
        fill[8] = f'v_add_f32_dpp v{GR}, v{GR}, v{GR} row_ror:4 row_mask:0xf bank_mask:0xf'
        fill[10] = f'v_add_f32_dpp v{GR}, v{GR}, v{GR} row_ror:8 row_mask:0xf bank_mask:0xf'
        k = 0
        for t in range(2):
            for s in range(2):
                for b in range(3):
                    d = D + 8*t + 4*s
                    e(f'v_mfma_f32_16x16x32_bf16 {vr(d)}, {vr(Lr+4*b)}, {vr(B1+16*b+8*s+4*t)}, {vr(d) if b else 0}')
                    if fill[k]: e(fill[k])
                    k += 1
        e(f'''v_add_f32 v{D}, v{D}, v{D+2}
              v_add_f32 v{D+5}, v{D+5}, v{D+7}
              v_add_f32 v{D}, v{D}, v{D+5}
              s_nop 1
              v_add_f32 v{D+8}, v{D+8}, v{D+10}
              s_nop 1
              v_add_f32 v{D+13}, v{D+13}, v{D+15}
              v_add_f32 v{D+8}, v{D+8}, v{D+13}''')
        self.swap_reduce(D, D+8, RS, GR)
        e(f'''ds_write_b32 v12, v{D}
              s_waitcnt lgkmcnt(0)
              s_branch L_S4_p2''')
        e('''L_S4_hi:
             s_waitcnt vmcnt(0)''')
        w2reads()
        e('''s_waitcnt lgkmcnt(0)
             s_barrier''')
        csread()
        e('L_S4_p2:')
        e(f'''s_barrier
              ds_read2_b32 v[{A}:{A+1}], v8 offset0:32 offset1:48
              ds_read2_b32 v[{A+2}:{A+3}], v8 offset0:96 offset1:112
              ds_read2_b32 v[{A+4}:{A+5}], v8 offset0:160 offset1:176
              ds_read2st64_b32 v[{A+6}:{A+7}], v7 offset0:0 offset1:1
              ds_read_b32 v{A+8}, v7 offset:512''')
        self.stamp(13)
        e(f'''v_mov_b32 v{A+10}, {hex(f2u(1/576))}
              v_mov_b32 v{A+11}, {hex(f2u(1/576))}
              v_mov_b32 v{A+15}, s{sTAG}
              s_waitcnt lgkmcnt(2)
              v_pk_add_f32 v[{A}:{A+1}], v[{A}:{A+1}], v[{A+2}:{A+3}]
              v_pk_add_f32 v[{A}:{A+1}], v[{A}:{A+1}], v[{A+4}:{A+5}]
              v_pk_mul_f32 v[{A}:{A+1}], v[{A}:{A+1}], v[{A+10}:{A+11}]
              v_fma_f32 v{A+1}, -v{A}, v{A}, v{A+1}
              v_add_f32 v{A+1}, {hex(f2u(1e-5))}, v{A+1}
              v_rsq_f32 v{A+1}, v{A+1}
              s_waitcnt lgkmcnt(0)
              v_add_f32 v{A+6}, v{A+6}, v{A+7}
              v_fma_f32 v{A+8}, -v{A}, v14, v{A+8}
              v_add_f32 v{A+6}, v{A+6}, v{A+8}
              v_mul_f32 v{A+6}, v{A+6}, v{A+1}
              v_mul_f32 v{A+7}, {hex(f2u(-math.log2(math.e)))}, v{A+6}
              v_exp_f32 v{A+7}, v{A+7}
              s_nop 0
              v_add_f32 v{A+7}, 1.0, v{A+7}
              v_rcp_f32 v{A+7}, v{A+7}
              s_nop 0
              v_mul_f32 v{A+6}, v{A+6}, v{A+7}
              s_nop 1
              v_mov_b32_dpp v{A+7}, v{A+6} quad_perm:[1,1,3,3] row_mask:0xf bank_mask:0xf
              v_cvt_pk_bf16_f32 v{A+6}, v{A+6}, v{A+7}
              s_nop 1''')
        for rho in range(4):
            e(f'v_mov_b32_dpp v{A+rho}, v{A+6} row_newbcast:{2*rho} row_mask:0xf bank_mask:0xf')
        e('s_nop 1')
        O = 144
        for t in range(6):
            e(f'v_mfma_f32_16x16x32_bf16 {vr(O+4*t)}, {vr(A)}, {vr(B2+4*t)}, 0')
        e(f'''s_nop 3
              v_cvt_pk_bf16_f32 v{A+12}, v{O}, v{O+4}
              s_nop 0
              v_cvt_pk_bf16_f32 v{A+13}, v{O+8}, v{O+12}
              s_nop 0
              v_cvt_pk_bf16_f32 v{A+14}, v{O+16}, v{O+20}
              buffer_store_dwordx4 {vr(A+12)}, v9, {srd(sWS)}, s{sT4} offen sc1''')
        self.stamp(14)
        self.end()

    def fin(self):
        e = self.e
        G, HF, A, D = 16, 56, 64, 68
        e('''L_FIN:
             s_barrier''')
        self.clear_check(4, G)
        e(f'''s_mul_i32 s{sT0}, s{sXC}, 3
              s_add_u32 s{sT0}, s{sT0}, s{sY}
              s_sub_u32 s{sU}, s{sT0}, 11
              s_lshr_b32 s{sT0}, s{sU}, 2
              s_and_b32 s{sT1}, s{sU}, 3
              s_mul_i32 s{sT2}, s{sT0}, 192
              s_lshl_b32 s{sT3}, s{sT1}, 3
              s_add_u32 s{sT2}, s{sT2}, s{sT3}
              s_add_u32 s{sT3}, s{sT2}, {H56}
              s_lshl_b32 s{sT4}, s{sU}, 6
              s_add_u32 s{sT4}, s{sT4}, {H7}
              v_lshrrev_b32 v4, 2, v1
              v_and_b32 v5, 3, v1
              v_lshl_add_u32 v6, v4, 2, v2
              v_mul_u32_u24 v7, 1152, v6
              v_lshl_add_u32 v7, v5, 1, v7
              v_mov_b32 v8, {OOB}
              v_cmp_gt_u32 vcc, 2, v4
              v_mul_u32_u24 v9, 1536, v6
              v_lshl_add_u32 v9, v5, 4, v9
              v_cndmask_b32 v7, v8, v7, vcc
              v_lshlrev_b32 v10, 7, v2
              v_lshl_add_u32 v10, v5, 1, v10
              v_cmp_eq_u32 vcc, 0, v4
              v_and_b32 v12, 1, v1
              v_lshlrev_b32 v12, 4, v12
              v_cndmask_b32 v10, v8, v10, vcc
              v_cmp_gt_u32 vcc, 2, v2
              v_mov_b32 v13, 0x3f80
              v_lshlrev_b32 v13, v12, v13
              v_cndmask_b32 v10, v8, v10, vcc
              v_cmp_eq_u32 vcc, 0, v2
              v_lshrrev_b32 v12, 1, v1
              v_mov_b32 v{A+3}, 0
              v_cndmask_b32 v11, v8, v10, vcc''')
        for rho in range(3):
            e(f'''v_cmp_eq_u32 vcc, {rho}, v12
                  s_nop 1
                  v_cndmask_b32 v{A+rho}, 0, v13, vcc''')
        e(f'''v_mov_b32 v14, 0xffff
              v_mov_b32 v15, s{sTAG}''')
        self.spin_init()
        top = self.lab('L_poll')
        e(f'{top}:')
        for t in range(6):
            e(f'buffer_load_ushort v{G+t}, v7, {srd(sWS)}, s{sT3} offen offset:{32*t} sc1')
        e(f'''s_waitcnt vmcnt(0)
              v_max3_u32 v12, v{G}, v{G+1}, v{G+2}
              v_max3_u32 v12, v12, v{G+3}, v{G+4}
              v_max_u32 v12, v12, v{G+5}
              v_cmp_eq_u32 vcc, v14, v12''')
        self.spin_back(top, 2)
        self.stamp(12)
        for k in range(3):
            e(f'v_lshl_or_b32 v{HF+k}, v{G+2*k+1}, 16, v{G+2*k}')
        e(f'v_mov_b32 v{HF+3}, 0')
        for i in range(1, 9):
            e(f'v_add_u32 v{72+i}, {i*16*1536}, v9')
        self.spin_init()
        top = self.lab('L_poll')
        e(f'{top}:')
        for i in range(9):
            e(f'buffer_load_dwordx4 {vr(G+4*i)}, v{72+i if i else 9}, {srd(sWS)}, s{sT4} offen sc1')
        e(f'v_mfma_f32_16x16x32_bf16 {vr(D)}, {vr(A)}, {vr(HF)}, 0')
        for i in range(9):
            e(f's_waitcnt vmcnt({8-i})')
            e(f'v_mfma_f32_16x16x32_bf16 {vr(D)}, {vr(A)}, {vr(G+4*i)}, {vr(D)}')
            if i == 0: e(f'v_xor_b32 v12, v15, v{G+3}')
            else: e(f'v_bitop3_b32 v12, v12, v{G+4*i+3}, v15 bitop3:0xf6')
        e('v_cmp_ne_u32 vcc, 0, v12')
        self.spin_back(top, self.c.sl_h7)
        self.stamp(13)
        e('s_nop 4')
        for k in (4, 8):
            for r in range(4):
                e(f'v_add_f32_dpp v{D+r}, v{D+r}, v{D+r} row_ror:{k} row_mask:0xf bank_mask:0xf')
        e(f'''v_cvt_pk_bf16_f32 v12, v{D}, v{D+1}
              v_cvt_pk_bf16_f32 v13, v{D+2}, v{D+3}
              buffer_store_short v12, v10, {srd(sOUT)}, s{sT2} offen
              buffer_store_short_d16_hi v12, v10, {srd(sOUT)}, s{sT2} offen offset:32
              buffer_store_short v13, v11, {srd(sOUT)}, s{sT2} offen offset:64
              buffer_store_short_d16_hi v13, v11, {srd(sOUT)}, s{sT2} offen offset:96''')
        self.stamp(14)
        e(f'''s_cmp_lg_u32 s{sU}, 0
              s_cbranch_scc1 L_end
              v_cmp_eq_u32 vcc, 0, v0
              v_mov_b32 v4, 0
              s_nop 0
              v_cndmask_b32 v4, v8, v4, vcc
              buffer_store_dword v15, v4, {srd(sWS)}, 0 offen''')
        self.end()

    def x_path(self):
        e = self.e
        e(f'''L_X:
              s_sub_u32 s{sY}, s{sY}, 16
              s_lshr_b32 s{sH}, s{sY}, 1
              s_lshl_b32 s{sT0}, s{sXC}, 3
              s_add_u32 s{sH}, s{sH}, s{sT0}
              s_and_b32 s{sJ}, s{sY}, 1
              s_cmp_ge_u32 s{sW}, 4
              s_cbranch_scc1 L_PV''')
        K, Q, D = 128, 64, 16
        e(f'''v_lshlrev_b32 v4, 4, v0
              s_lshl_b32 s{sT0}, s{sH}, 17
              s_lshl_b32 s{sT1}, s{sW}, 15
              s_add_u32 s{sT0}, s{sT0}, s{sT1}
              s_mul_i32 s{sT1}, s{sW}, {32*1040}
              s_mov_b32 m0, s{sT1}''')
        if self.c.x_tagfirst: self.get_tag()
        if self.c.x_sleep: e(f's_sleep {self.c.x_sleep}')
        if self.c.stagger:
            e(f'''s_lshl_b32 s{sT2}, s{sJ}, 14
                  s_add_u32 s{sT3}, s{sT0}, s{sT2}''')
            self.dma_loop(16, 4, sCKV, sT3, 1024, 1040)
            e(f'''s_xor_b32 s{sT2}, s{sT2}, 16384
                  s_add_u32 s{sT3}, s{sT0}, s{sT2}''')
            self.dma_loop(16, 4, sCKV, sT3, 1024, 1040)
        else:
            self.dma_loop(32, 4, sCKV, sT0, 1024, 1040)
        self.stamp(1)
        e(f'''v_and_b32 v5, 7, v1
              v_lshrrev_b32 v6, 3, v1
              v_lshl_add_u32 v5, v5, 1, v6
              v_mul_u32_u24 v5, 1040, v5
              v_lshl_add_u32 v5, v2, 8, v5
              v_add_u32 v5, s{sT1}, v5
              v_mul_u32_u24 v6, 1040, v1
              v_lshl_add_u32 v6, v2, 8, v6
              v_add_u32 v6, {L_QA}, v6
              v_lshlrev_b32 v7, 2, v1
              v_add_u32 v7, {L_MX}, v7
              s_lshl_b32 s{sT2}, s{sW}, 10
              s_add_u32 s{sT2}, s{sT2}, {L_PB}
              v_add_u32 v8, s{sT2}, v4
              v_mov_b32 v9, 0xff800000
              v_mul_u32_u24 v3, 80, v1
              v_add_u32 v3, {L_LS}, v3
              s_lshl_b32 s{sT2}, s{sW}, 4
              v_lshl_add_u32 v10, v2, 2, s{sT2}
              v_add_u32 v10, v10, v3
              v_mov_b32 v11, {OOB}
              v_cmp_gt_u32 vcc, 16, v0
              s_mul_i32 s{sT2}, s{sH}, {STS}
              s_lshl_b32 s{sT3}, s{sJ}, 8
              s_add_u32 s{sT2}, s{sT2}, s{sT3}
              s_add_u32 s{sT2}, s{sT2}, {ST}
              v_cndmask_b32 v11, v11, v4, vcc''')
        if not self.c.x_tagfirst: self.get_tag()
        e(f'''v_mov_b32 v14, s{sTAG}
              v_mov_b32 v15, s{sTAG}
              ds_write_b32 v7, v9''')
        n = self.c.x_n
        assert n <= 16
        e('s_waitcnt vmcnt(16)')
        for s in range(16): e(f'ds_read_b128 {vr(K+4*s)}, v5 offset:{16*s}')
        e(f'''s_waitcnt vmcnt({n})
              s_barrier''')
        self.stamp(2)
        e('s_waitcnt vmcnt(0)')
        self.stamp(3)
        for s in range(16): e(f'ds_read_b128 {vr(K+64+4*s)}, v5 offset:{16640+16*s}')
        e('''s_waitcnt lgkmcnt(0)
             s_barrier''')
        self.stamp(4)
        PRE = 12
        for s in range(PRE): e(f'ds_read_b128 {vr(Q+4*s)}, v6 offset:{16*s}')
        for s in range(16):
            issued = min(16, PRE + s)
            e(f's_waitcnt lgkmcnt({issued-1-s})')
            for t in range(2):
                e(f'v_mfma_f32_16x16x32_bf16 {vr(D+4*t)}, {vr(K+64*t+4*s)}, {vr(Q+4*s)}, {vr(D+4*t) if s else 0}')
            if PRE + s < 16: e(f'ds_read_b128 {vr(Q+4*(PRE+s))}, v6 offset:{16*(PRE+s)}')
        e(f'''s_nop 6
              v_max3_f32 v9, v{D}, v{D+1}, v{D+2}
              v_max3_f32 v9, v9, v{D+3}, v{D+4}
              v_max3_f32 v9, v9, v{D+5}, v{D+6}
              v_max_f32 v9, v9, v{D+7}
              ds_max_f32 v7, v9
              s_waitcnt lgkmcnt(0)
              s_barrier
              ds_read_b32 v12, v7''')
        self.stamp(5)
        e('s_waitcnt lgkmcnt(0)')
        for k in range(8): e(f'v_sub_f32 v{D+k}, v{D+k}, v12')
        for k in range(8): e(f'v_exp_f32 v{D+k}, v{D+k}')
        for k in range(4): e(f'v_cvt_pk_bf16_f32 v{D+8+k}, v{D+2*k}, v{D+2*k+1}')
        e(f'''ds_write_b128 v8, {vr(D+8)}
              v_pk_add_f32 {vr(D,2)}, {vr(D,2)}, {vr(D+2,2)}
              v_pk_add_f32 {vr(D+4,2)}, {vr(D+4,2)}, {vr(D+6,2)}
              v_pk_add_f32 {vr(D,2)}, {vr(D,2)}, {vr(D+4,2)}
              v_add_f32 v{D}, v{D}, v{D+1}
              ds_write_b32 v10, v{D}
              s_waitcnt lgkmcnt(0)
              s_barrier''')
        self.stamp(6)
        sk = self.lab('L_nostat')
        e(f'''s_cmp_lg_u32 s{sW}, 0
              s_cbranch_scc1 {sk}''')
        for s in range(4): e(f'ds_read_b128 {vr(D+4*s)}, v3 offset:{16*s}')
        e(f'''s_waitcnt lgkmcnt(2)
              v_pk_add_f32 {vr(D,2)}, {vr(D,2)}, {vr(D+2,2)}
              v_pk_add_f32 {vr(D+4,2)}, {vr(D+4,2)}, {vr(D+6,2)}
              v_pk_add_f32 {vr(D,2)}, {vr(D,2)}, {vr(D+4,2)}
              s_waitcnt lgkmcnt(0)
              v_pk_add_f32 {vr(D+8,2)}, {vr(D+8,2)}, {vr(D+10,2)}
              v_pk_add_f32 {vr(D+12,2)}, {vr(D+12,2)}, {vr(D+14,2)}
              v_pk_add_f32 {vr(D,2)}, {vr(D,2)}, {vr(D+8,2)}
              v_pk_add_f32 {vr(D,2)}, {vr(D,2)}, {vr(D+12,2)}
              v_add_f32 v13, v{D}, v{D+1}''')
        e(f'buffer_store_dwordx4 v[12:15], v11, {srd(sWS)}, s{sT2} offen sc1')
        self.stamp(7)
        e(f'{sk}:')
        e('s_branch L_X_D')
        V, G, P, DD = 128, 16, 48, 64
        e(f'''L_PV:
              s_sub_u32 s{sT4}, s{sW}, 4
              v_lshlrev_b32 v4, 18, v2
              v_lshl_add_u32 v4, v1, 4, v4
              s_lshl_b32 s{sT0}, s{sJ}, 20
              s_lshl_b32 s{sT1}, s{sT4}, 14
              s_add_u32 s{sT0}, s{sT0}, s{sT1}
              s_lshl_b32 s{sT1}, s{sH}, 8
              s_add_u32 s{sT0}, s{sT0}, s{sT1}
              s_add_u32 s{sT0}, s{sT0}, {PAY}
              s_add_u32 s{sT1}, s{sT0}, 65536
              s_add_u32 s{sT2}, s{sT0}, {2*65536}
              s_add_u32 s{sT3}, s{sT0}, {3*65536}''')
        for k in range(4): e(f'v_mov_b32 v{G+k}, -1')
        for r in range(4): e(f'buffer_store_dwordx4 {vr(G)}, v4, {srd(sWS)}, s{sT0+r} offen sc1')
        e(f'''v_and_b32 v5, 1, v2
              v_lshlrev_b32 v5, 3, v5
              v_lshrrev_b32 v6, 2, v1
              v_lshl_add_u32 v5, v6, 1, v5
              v_lshrrev_b32 v6, 1, v2
              v_add_u32 v5, v5, v6
              v_mul_u32_u24 v5, 1040, v5
              v_and_b32 v6, 3, v1
              v_lshl_add_u32 v5, v6, 3, v5
              s_lshl_b32 s{sT5}, s{sT4}, 8
              v_add_u32 v5, s{sT5}, v5
              v_add_u32 v6, {64*1040}, v5
              v_lshlrev_b32 v7, 4, v0
              v_add_u32 v12, 4096, v7
              v_add_u32 v13, {L_PB}, v7
              s_mul_i32 s{sT5}, s{sT4}, {4*1040}
              s_add_u32 s{sT5}, s{sT5}, {L_QA}
              v_lshl_add_u32 v8, v0, 3, s{sT5}
              v_add_u32 v9, 1040, v8
              v_add_u32 v10, 2080, v8
              v_add_u32 v11, 3120, v8
              s_lshl_b32 s{sT5}, s{sJ}, 15
              s_lshl_b32 s{sU}, s{sT4}, 13
              s_add_u32 s{sT5}, s{sT5}, s{sU}
              s_add_u32 s{sT5}, s{sT5}, {H2}''')
        self.get_tag()
        e(f'v_mov_b32 v15, s{sTAG}')
        self.spin_init()
        def loads():
            for i in range(8):
                e(f'buffer_load_dwordx4 {vr(G+4*i)}, v{7 if i < 4 else 12}, {srd(sWS)}, s{sT5} offen offset:{1024*(i&3)} sc1')
        def trreads(a):
            for s in range(4):
                for T in range(8):
                    e(f'ds_read_b64_tr_b16 {vr(V+16*T+4*s+2*a,2)}, v{5 if s < 2 else 6} offset:{(32*(s&1)+16*a)*1040+32*T}')
        e('s_barrier')
        loads()
        self.stamp(2)
        trreads(0)
        chk = self.lab('L_chk'); top = self.lab('L_poll')
        e(f's_branch {chk}\n{top}:')
        loads()
        e(f'{chk}:')
        for i in range(8):
            e(f's_waitcnt vmcnt({7-i})')
            e(f'v_bitop3_b32 v{P+i}, v{G+4*i+1}, v{G+4*i+3}, v15 bitop3:0x7e')
            e(f'ds_write2_b32 v{8+(i>>1)}, v{G+4*i}, v{G+4*i+2} offset0:{128*(i&1)} offset1:{128*(i&1)+1}')
        e(f'''v_or3_b32 v{P}, v{P}, v{P+1}, v{P+2}
              v_or3_b32 v{P+3}, v{P+3}, v{P+4}, v{P+5}
              v_or3_b32 v{P}, v{P}, v{P+6}, v{P+7}
              v_or_b32 v{P}, v{P}, v{P+3}
              v_cmp_ne_u32 vcc, 0, v{P}
              s_waitcnt lgkmcnt(0)''')
        self.spin_back(top, self.c.sl_h2)
        self.stamp(3)
        e('s_barrier')
        self.stamp(4)
        trreads(1)
        e('''s_barrier
             s_waitcnt lgkmcnt(0)
             s_barrier''')
        for s in range(4): e(f'ds_read_b128 {vr(P+4*s)}, v13 offset:{1024*s}')
        self.stamp(6)
        def cvt(Tp):
            for r in range(4):
                e(f'v_cvt_pk_bf16_f32 v{G+4*r+Tp}, v{DD+8*Tp+r}, v{DD+8*Tp+4+r}')
        for Tp in range(4):
            for s in range(4):
                if Tp == 0: e(f's_waitcnt lgkmcnt({3-s})')
                for T in (2*Tp, 2*Tp+1):
                    e(f'v_mfma_f32_16x16x32_bf16 {vr(DD+4*T)}, {vr(P+4*s)}, {vr(V+16*T+4*s)}, {vr(DD+4*T) if s else 0}')
            if Tp: cvt(Tp-1)
        e('s_nop 3')
        for r in range(4):
            e(f'''v_cvt_pk_bf16_f32 v{G+4*r+3}, v{DD+24+r}, v{DD+28+r}
                  buffer_store_dwordx4 {vr(G+4*r)}, v4, {srd(sWS)}, s{sT0+r} offen sc1''')
        self.stamp(7)
        e(f'''L_X_D:
              s_barrier
              s_cmp_ge_u32 s{sW}, 6
              s_cbranch_scc1 L_end
              s_mov_b32 s{sU}, s{sY}''')
        self.stamp(8)
        self.s4_issue()

    def dump(self):
        e = self.e
        e(f'''L_dump:
              s_memrealtime s[{sST+30}:{sST+31}]
              s_waitcnt lgkmcnt(0)
              s_lshl_b32 s{sT0}, s2, 3
              s_add_u32 s{sT0}, s{sT0}, s{sW}
              s_lshl_b32 s{sT0}, s{sT0}, 6
              s_add_u32 s{sT0}, s{sT0}, {DBG}
              v_mov_b32 v4, 0
              s_mov_b64 exec, 1''')
        for i in range(16):
            e(f'''v_mov_b32 v5, s{sST+2*i}
                  buffer_store_dword v5, v4, {srd(sWS)}, s{sT0} offen offset:{4*i}''')
        if self.c.hold:
            c = self.c
            e(f'''s_sub_u32 s{sT0}, s{sST+2*c.hi}, s{sST}
                  s_cmp_eq_u32 s{sST+2*c.hi}, 0
                  s_cselect_b32 s{sT0}, 0, s{sT0}
                  s_lshr_b32 s{sT1}, s2, 3
                  s_cmp_lt_u32 s{sT1}, {c.hy0}
                  s_cbranch_scc1 L_exit
                  s_cmp_ge_u32 s{sT1}, {c.hy1}
                  s_cbranch_scc1 L_exit
                  s_cmp_lt_u32 s{sW}, {c.hw0}
                  s_cbranch_scc1 L_exit
                  s_cmp_ge_u32 s{sW}, {c.hw1}
                  s_cbranch_scc1 L_exit
                  s_cmp_lg_u32 s{sXC}, {c.hx if c.hx >= 0 else f's{sXC}'}
                  s_cbranch_scc1 L_exit
                  s_min_u32 s{sT0}, s{sT0}, 10000
                  s_mul_i32 s{sT0}, s{sT0}, {c.hk}
                  s_add_u32 s{sT0}, s{sT0}, {c.hold}
                  L_hold:
                  s_sleep 4
                  s_memrealtime s[{sT2}:{sT3}]
                  s_waitcnt lgkmcnt(0)
                  s_sub_u32 s{sT2}, s{sT2}, s{sST}
                  s_cmp_lt_u32 s{sT2}, s{sT0}
                  s_cbranch_scc1 L_hold''')
        e('s_endpgm')

    def build(self):
        e = self.e
        if self.c.stamps:
            for i in range(1, 16): e(f's_mov_b32 s{sST+2*i}, 0')
        self.prologue()
        self.s1a()
        self.y_rest()
        self.s1b()
        self.s3a()
        self.s3b()
        self.fin()
        self.x_path()
        self.s4()
        if self.c.stamps: self.dump()
        e('''L_exit:
             s_endpgm
             L_codeend:''')
        body = self.L
        nh = hazard.check(body)
        hdr = open('cdna_kernels/' + KN[:-7] + '.s.ref').read().split('; Override')[0]
        out = hdr + f'''; Single persistent launch, one workgroup per CU; generated by a script of my own (stage map in the labels).
; @launch grid=(256,1,1) block=(512,1,1) lds={LDS_SIZE}
.amdgcn_target "amdgcn-amd-amdhsa--gfx950"
.text
.globl {KN}
.p2align 8
.type {KN},@function
{KN}:
''' + '\n'.join(body) + f'''
.section .rodata,"a"
.p2align 6
.amdhsa_kernel {KN}
  .amdhsa_next_free_vgpr 256
  .amdhsa_next_free_sgpr {96 if self.c.stamps else 64}
  .amdhsa_accum_offset 256
  .amdhsa_group_segment_fixed_size 0
  .amdhsa_kernarg_size 96
  .amdhsa_user_sgpr_count 2
  .amdhsa_user_sgpr_kernarg_segment_ptr 1
  .amdhsa_system_sgpr_workgroup_id_x 1
.end_amdhsa_kernel
'''
        return out, nh

if __name__ == '__main__':
    cfg = Cfg()
    out = sys.argv[1]
    for a in sys.argv[2:]:
        k, v = a.split('=')
        setattr(cfg, k, type(getattr(Cfg, k))(int(v, 0)))
    s, nh = Gen(cfg).build()
    open(out, 'w').write(s)
    print('written', out, 'hazards', nh)
```
